```python
import torch

def _softmax(x, axis=-1):
    return torch.softmax(x, dim=axis)
def _gelu(x):
    return torch.nn.functional.gelu(x, approximate="tanh")
def _silu(x):
    return torch.nn.functional.silu(x)
def _sigmoid(x):
    return torch.sigmoid(x)
def _layernorm(x, axis=-1, eps=1e-5):
    m = x.mean(dim=axis, keepdim=True)
    v = x.var(dim=axis, keepdim=True, unbiased=False)
    return (x - m) / torch.sqrt(v + eps)
def _scatter_add(tgt, idx, src, axis=0):
    return tgt.clone().index_add_(axis, idx, src)
def _segment_sum(src, seg, n):
    out = torch.zeros((n,) + src.shape[1:], dtype=src.dtype)
    return out.index_add_(0, seg, src)
def _pad(x, pw):
    flat = tuple(v for pair in reversed(pw) for v in pair)
    return torch.nn.functional.pad(x, flat)

kernel_name = 'gather_scatter__mpnn_edge_mlp__graph'

def setup_inputs():

    _w = (lambda a: (lambda t: t.to(torch.bfloat16) if t.is_floating_point() else t)(torch.as_tensor(a)))
    N, deg, D, De = 10000, 32, 128, max(0, 1)
    E = N * deg
    return {
        "x": _w((lambda *s: torch.randn(*s, dtype=torch.bfloat16) * 0.05)(N, D)),
        "e_attr": _w((lambda *s: torch.randn(*s, dtype=torch.bfloat16) * 0.4)(E, De)),
        "src": _w((lambda lo, hi, *s: torch.randint(lo, hi, s))(0, N, E).to(torch.int64)),
        "dst": _w((lambda lo, hi, *s: torch.randint(lo, hi, s))(0, N, E).to(torch.int64)),
        "w_msg": _w((lambda *s: torch.randn(*s, dtype=torch.bfloat16) * 0.4)(2 * D + De, D)),
        "w_upd": _w((lambda *s: torch.randn(*s, dtype=torch.bfloat16) * 0.05)(2 * D, D)),
    }

def reference(x, e_attr, src, dst, w_msg, w_upd):
    N, D = x.shape
    m_in = torch.concatenate([x[src], x[dst], e_attr], axis=-1)
    msg = _silu(m_in @ w_msg)
    agg = _segment_sum(msg, dst, N)
    return _silu(torch.concatenate([x, agg], axis=-1) @ w_upd)
```

```python
HDR = open('gather_scatter__mpnn_edge_mlp__graph.s.ref').read().split('; Override')[0].rstrip()

N = 10000; D = 128; E = 320000
NB = 250
NPB = 40
NC = 250
EPC = 1280
WS_P    = 0x000000
WS_REC  = 0x280000
WS_OFFS = 0x500000
WS_FRAG = 0x540000
NLOG2E = 0xBFB8AA3B
NLN2   = 0xBF317218

class Asm:
    def __init__(self):
        self.l = []
    def __call__(self, s):
        for x in s.split('\n'):
            x = x.strip()
            if x: self.l.append(('' if x.endswith(':') else '  ') + x)
    def text(self):
        import re
        for x in self.l:
            m = re.search(r'offset:(\d+)', x)
            if m:
                v = int(m.group(1))
                if x.strip().startswith('buffer_') and v > 4095: raise Exception('buffer offset too large: ' + x)
                if x.strip().startswith('ds_') and v > 65535: raise Exception('ds offset too large: ' + x)
        return '\n'.join(self.l) + '\n'

def kernel_head(name):
    return f""".globl {name}
.p2align 8
.type {name},@function
{name}:
"""
def kernel_desc(name, vgpr, sgpr=102):
    acc = (vgpr + 3) // 4 * 4
    return f""".section .rodata,"a"
.p2align 6
.amdhsa_kernel {name}
  .amdhsa_next_free_vgpr {vgpr}
  .amdhsa_next_free_sgpr {sgpr}
  .amdhsa_accum_offset {acc}
  .amdhsa_group_segment_fixed_size 0
  .amdhsa_kernarg_size 72
  .amdhsa_user_sgpr_count 2
  .amdhsa_user_sgpr_kernarg_segment_ptr 1
  .amdhsa_system_sgpr_workgroup_id_x 1
  .amdhsa_float_denorm_mode_32 3
.end_amdhsa_kernel
.text
"""
def srd(a, d, base_lo, base_hi, nbytes, w3='0x00020000', add=0):
    if add:
        a(f's_add_u32 s{d}, s{base_lo}, {add}')
        a(f's_addc_u32 s{d+1}, s{base_hi}, 0')
    else:
        a(f's_mov_b32 s{d}, s{base_lo}')
        a(f's_mov_b32 s{d+1}, s{base_hi}')
    a(f's_mov_b32 s{d+2}, {nbytes}')
    a(f's_mov_b32 s{d+3}, {w3}')

def wave_scan_incl(a, v, tmpnop=True):
    for sh in (1, 2, 4, 8):
        a('s_nop 1')
        a(f'v_add_u32_dpp v{v}, v{v}, v{v} row_shr:{sh} row_mask:0xf bank_mask:0xf bound_ctrl:0')
    a('s_nop 1')
    a(f'v_add_u32_dpp v{v}, v{v}, v{v} row_bcast:15 row_mask:0xa bank_mask:0xf')
    a('s_nop 1')
    a(f'v_add_u32_dpp v{v}, v{v}, v{v} row_bcast:31 row_mask:0xc bank_mask:0xf')
    a('s_nop 1')
```

```python
from common import *

K1_NPART = NC
K1_NGEMM = 157
K1_NPREP = 3
K1_GRID = K1_NPART + K1_NGEMM + K1_NPREP
K1_LDS = 32768

def perm_transposes(a, R, F):
    for j in range(8):
        sel = 's40' if j % 2 == 0 else 's41'
        for dp in range(4):
            a(f'v_perm_b32 v{F+j*4+dp}, v{R+(2*dp+1)*4+j//2}, v{R+(2*dp)*4+j//2}, {sel}')

def gen_k1(a):
    name = 'mpnn_k1_kernel'
    a(kernel_head(name))
    a(f'''
    s_cmp_ge_u32 s2, {K1_GRID}
    s_cbranch_scc1 K1_END
    s_load_dwordx4 s[4:7], s[0:1], 0
    s_load_dwordx4 s[8:11], s[0:1], 16
    s_load_dwordx4 s[12:15], s[0:1], 32
    s_load_dwordx2 s[16:17], s[0:1], 64
    v_and_b32 v1, 63, v0
    v_lshrrev_b32 v2, 6, v0
    s_cmp_ge_u32 s2, {K1_NPART}
    s_cbranch_scc1 K1_NOTPART
    ''')
    a(f'''
    s_mul_i32 s20, s2, {EPC}
    v_add_u32 v3, s20, v0
    v_lshlrev_b32 v4, 2, v3
    v_lshlrev_b32 v5, 1, v3
    v_add_u32 v6, 0x1000, v4
    v_lshlrev_b32 v7, 2, v0
    v_mov_b32 v8, 0
    ds_write_b32 v7, v8
    s_waitcnt lgkmcnt(0)
    ''')
    srd(a, 24, 10, 11, E*4)
    srd(a, 28, 8, 9, E*4)
    srd(a, 32, 6, 7, E*2)
    DST, SRC, EA = 10, 15, 20
    for j in range(5):
        if j < 4: a(f'buffer_load_dword v{DST+j}, v4, s[24:27], 0 offen offset:{j*1024}')
        else:     a(f'buffer_load_dword v{DST+j}, v6, s[24:27], 0 offen')
    for j in range(5):
        if j < 4: a(f'buffer_load_dword v{SRC+j}, v4, s[28:31], 0 offen offset:{j*1024}')
        else:     a(f'buffer_load_dword v{SRC+j}, v6, s[28:31], 0 offen')
    for j in range(5):
        a(f'buffer_load_ushort v{EA+j}, v5, s[32:35], 0 offen offset:{j*512}')
    srd(a, 24, 16, 17, NC*EPC*8, add=WS_REC)
    srd(a, 28, 16, 17, NB*256*4, add=WS_OFFS)
    a('s_waitcnt lgkmcnt(0)')
    a('s_barrier')
    BK, RK, REC = 25, 30, 36
    a('v_mov_b32 v9, 1')
    for j in range(5):
        a(f's_waitcnt vmcnt({14-j})')
        a(f'v_mul_u32_u24 v{BK+j}, 52429, v{DST+j}')
        a(f'v_lshrrev_b32 v{BK+j}, 21, v{BK+j}')
        a(f'v_mul_u32_u24 v8, 40, v{BK+j}')
        a(f'v_sub_u32 v{DST+j}, v{DST+j}, v8')
        a(f'v_lshlrev_b32 v{DST+j}, 2, v{DST+j}')
        a(f'v_lshlrev_b32 v{BK+j}, 2, v{BK+j}')
        a(f'ds_add_rtn_u32 v{RK+j}, v{BK+j}, v9')
    a('s_waitcnt vmcnt(0)')
    for j in range(5):
        a(f'v_lshlrev_b32 v{REC+2*j}, 8, v{SRC+j}')
        a(f'v_lshl_or_b32 v{REC+2*j+1}, v{EA+j}, 16, v{DST+j}')
    a('s_waitcnt lgkmcnt(0)')
    a('s_barrier')
    a('''
    v_lshlrev_b32 v8, 4, v1
    ds_read_b128 v[48:51], v8
    s_waitcnt lgkmcnt(0)
    v_add_u32 v52, v48, v49
    v_add_u32 v53, v52, v50
    v_add_u32 v54, v53, v51
    v_mov_b32 v55, v54
    ''')
    wave_scan_incl(a, 55)
    a('''
    v_sub_u32 v56, v55, v54
    v_add_u32 v57, v56, v48
    v_add_u32 v58, v56, v52
    v_add_u32 v59, v56, v53
    ds_write_b128 v8, v[56:59] offset:1024
    ds_read_b32 v60, v7
    ds_read_b32 v61, v7 offset:1024
    ''')
    for j in range(5):
        a(f'ds_read_b32 v{48+j}, v{BK+j} offset:1024')
    a('s_waitcnt lgkmcnt(0)')
    for j in range(5):
        a(f'v_add_u32 v{48+j}, v{48+j}, v{RK+j}')
        a(f'v_lshlrev_b32 v{48+j}, 3, v{48+j}')
        a(f'ds_write_b64 v{48+j}, v[{REC+2*j}:{REC+2*j+1}] offset:2048')
    a('''
    v_lshl_or_b32 v60, v60, 16, v61
    v_lshlrev_b32 v61, 10, v0
    s_lshl_b32 s21, s2, 2
    buffer_store_dword v60, v61, s[28:31], s21 offen
    s_waitcnt lgkmcnt(0)
    s_barrier
    v_lshlrev_b32 v8, 3, v0
    ''')
    for j in range(5):
        a(f'ds_read_b64 v[{REC+2*j}:{REC+2*j+1}], v8 offset:{2048+j*2048}')
    a(f's_mul_i32 s21, s2, {EPC*8}')
    a('v_add_u32 v9, 0x1000, v8')
    a('v_add_u32 v7, 0x2000, v8')
    for j in range(5):
        a(f's_waitcnt lgkmcnt({4-j})')
        vb, off = [(8,0),(8,2048),(9,0),(9,2048),(7,0)][j]
        a(f'buffer_store_dwordx2 v[{REC+2*j}:{REC+2*j+1}], v{vb}, s[24:27], s21 offen offset:{off}')
    a('s_endpgm')

    a('K1_NOTPART:')
    a('''
    v_and_b32 v3, 15, v1
    v_lshrrev_b32 v4, 4, v1
    v_readfirstlane_b32 s3, v2
    s_mov_b32 s40, 0x05040100
    s_mov_b32 s41, 0x07060302
    s_waitcnt lgkmcnt(0)
    ''')
    RAW, FR = 16, 48
    a(f's_cmp_ge_u32 s2, {K1_NPART+K1_NGEMM}')
    a('s_cbranch_scc1 K1_PREP')
    srd(a, 24, 12, 13, 128*256)
    srd(a, 28, 4, 5, N*256)
    srd(a, 32, 16, 17, N*256, add=WS_P)
    a(f'''
    s_sub_u32 s20, s2, {K1_NPART}
    s_lshl_b32 s20, s20, 2
    s_add_u32 s20, s20, s3                 ; tile T
    s_lshl_b32 s21, s3, 5                  ; 32*w
    v_lshl_add_u32 v5, v4, 3, s21          ; 32w + 8q
    v_lshlrev_b32 v5, 8, v5
    v_lshl_add_u32 v5, v3, 4, v5           ; + c*16
    ''')
    for i in range(8):
        a(f'buffer_load_dwordx4 v[{RAW+4*i}:{RAW+4*i+3}], v5, s[24:27], 0 offen offset:{i*256}')
    XA = 80
    a(f'''
    s_lshl_b32 s21, s20, 4                 ; 16*T
    v_add_u32 v6, s21, v3                  ; node = 16T + m
    v_lshlrev_b32 v6, 8, v6
    v_lshl_add_u32 v6, v4, 4, v6           ; + 16q
    ''')
    for s in range(4):
        a(f'buffer_load_dwordx4 v[{XA+4*s}:{XA+4*s+3}], v6, s[28:31], 0 offen offset:{64*s}')
    a('s_waitcnt vmcnt(4)')
    perm_transposes(a, RAW, FR)
    a('''
    s_lshl_b32 s21, s3, 13
    v_lshl_add_u32 v7, v1, 4, s21
    ''')
    for j in range(8):
        a(f'ds_write_b128 v7, v[{FR+4*j}:{FR+4*j+3}] offset:{j*1024}')
    ACC = 96
    for r in range(32): a(f'v_mov_b32 v{ACC+r}, 0')
    a('s_waitcnt lgkmcnt(0)')
    a('s_barrier')
    a('v_lshlrev_b32 v7, 4, v1')
    bufs = [RAW, FR]
    for j in range(8):
        a(f'ds_read_b128 v[{bufs[0]+4*j}:{bufs[0]+4*j+3}], v7 offset:{j*1024}')
    a('s_waitcnt vmcnt(0)')
    for s in range(4):
        if s < 3:
            for j in range(8):
                b = bufs[(s+1) % 2]
                a(f'ds_read_b128 v[{b+4*j}:{b+4*j+3}], v7 offset:{((s+1)*8+j)*1024}')
        for j in range(8):
            rem = (8 if s < 3 else 0) + (7 - j)
            a(f's_waitcnt lgkmcnt({min(rem,15)})')
            b = bufs[s % 2]
            a(f'v_mfma_f32_16x16x32_bf16 v[{ACC+4*j}:{ACC+4*j+3}], v[{XA+4*s}:{XA+4*s+3}], v[{b+4*j}:{b+4*j+3}], v[{ACC+4*j}:{ACC+4*j+3}]')
    a(f'''
    s_lshl_b32 s21, s20, 4
    v_lshl_add_u32 v6, v4, 2, s21          ; 16T + 4q
    v_lshlrev_b32 v6, 8, v6
    v_lshl_add_u32 v6, v3, 4, v6           ; + c*16
    s_mov_b32 s22, {NLOG2E:#x}
    s_nop 7
    ''')
    for r in range(4):
        for j in range(8):
            a(f'v_mul_f32 v{ACC+4*j+r}, s22, v{ACC+4*j+r}')
        for d in range(4):
            a(f'v_cvt_pk_bf16_f32 v{RAW+4*r+d}, v{ACC+4*(2*d)+r}, v{ACC+4*(2*d+1)+r}')
        a(f'buffer_store_dwordx4 v[{RAW+4*r}:{RAW+4*r+3}], v6, s[32:35], 0 offen offset:{256*r}')
    a('s_endpgm')

    a('K1_PREP:')
    a(f's_sub_u32 s20, s2, {K1_NPART+K1_NGEMM}')
    a('''
    s_cmp_eq_u32 s20, 0
    s_cselect_b32 s24, s12, s14
    s_cselect_b32 s25, s13, s15
    s_cmp_eq_u32 s20, 1
    s_cselect_b32 s21, 0, 0x8000
    s_add_u32 s24, s24, s21
    s_addc_u32 s25, s25, 0
    s_mov_b32 s26, 0x8000
    s_mov_b32 s27, 0x00020000
    ''')
    srd(a, 28, 16, 17, 3*32768, add=WS_FRAG)
    a('''
    s_lshl_b32 s21, s3, 5                  ; 32 s
    v_lshl_add_u32 v5, v4, 3, s21          ; 32s + 8q
    s_cmp_eq_u32 s20, 2
    s_cbranch_scc1 K1_PREP_PERM
    v_lshlrev_b32 v5, 8, v5
    v_lshl_add_u32 v5, v3, 4, v5
    ''')
    for i in range(8):
        a(f'buffer_load_dwordx4 v[{RAW+4*i}:{RAW+4*i+3}], v5, s[24:27], 0 offen offset:{i*256}')
    a('s_branch K1_PREP_GO')
    a('K1_PREP_PERM:')
    a('''
    v_and_b32 v5, 63, v5
    v_lshlrev_b32 v5, 1, v5
    s_lshr_b32 s21, s3, 1
    v_add_u32 v5, s21, v5
    v_lshlrev_b32 v5, 8, v5
    v_lshl_add_u32 v5, v3, 4, v5
    ''')
    for i in range(8):
        a(f'buffer_load_dwordx4 v[{RAW+4*i}:{RAW+4*i+3}], v5, s[24:27], 0 offen offset:{i*512}')
    a('K1_PREP_GO:')
    a('''
    v_lshrrev_b32 v6, 2, v3                ; u
    v_lshlrev_b32 v6, 13, v6               ; u*8192
    v_and_b32 v7, 3, v3
    v_lshlrev_b32 v7, 6, v7                ; 4*(c%4)*16
    v_add_u32 v6, v6, v7
    v_lshl_add_u32 v6, v4, 8, v6           ; + 16q*16
    s_lshl_b32 s21, s20, 15
    s_lshl_b32 s22, s3, 10
    s_add_u32 s21, s21, s22
    v_add_u32 v6, s21, v6
    v_add_u32 v7, 0x1000, v6               ; T=1: +4*1024
    s_waitcnt vmcnt(0)
    ''')
    perm_transposes(a, RAW, FR)
    for j in range(8):
        vb = 6 if j < 4 else 7
        a(f'buffer_store_dwordx4 v[{FR+4*j}:{FR+4*j+3}], v{vb}, s[28:31], 0 offen offset:{(j%4)*16}')
    a('K1_END:')
    a('s_endpgm')
    a(kernel_desc(name, 128))
    return name
```

```python
from common import *

LC = 2048
L_OFF  = 0
L_EIMG = L_OFF + (LC + 64) * 4
L_INFO = L_EIMG + (LC // 4 + 8) * 32
L_CNT  = L_INFO + (LC // 4 + 80) * 4
L_ZERO = L_CNT + 256
L_MISC = L_ZERO + 256
L_AGG  = L_MISC + 64
ROWS = 528
L_X    = L_AGG + 40 * ROWS
XS = 272
L_Q    = L_X + 48 * XS
L_U    = L_Q + 40 * ROWS
L_W    = L_U + 40 * ROWS
K2_LDS = L_W + 32768
assert L_X == 49152 and L_X % 16 == 0 and L_W % 16 == 0
LIM_BIG = 20
LIM_SMALL = 7
CAP_OK = LC - 3 * NPB

V_TID, V_LANE, V_OFFA, V_EA, V_EINC, V_AGGA, V_QA, V_INFO, V_INFON, V_L4, V_L8, V_CELL = range(12)
V_C = 12; V_D0 = 16; V_D1 = 20; V_E = 24; V_N = 32; V_DN = 34; V_T = 36; V_R = 38
V_A = [40, 44]; V_OFF = [48, 52]; V_B = 56
V_SOFF = 88; V_SA = 92; V_SB = 96; V_SACC = 104; V_W3 = 106
V_TMP = 107
NVGPR = 112
V_REC = 40; V_RANK = 50; V_NT = 55; V_TP = 104
V_W3P = 111
S_B = 2; S_W = 3
S_X = 4; S_WM = 6; S_OUT = 8; S_WS = 10
S_P = 12
S_REC = 16; S_OFFS = 20; S_XR = 24; S_FR = 28; S_OR = 32; S_W3R = 36
S_DONE = 40; S_MAXC = 41; S_LIM = 42; S_G = 43; S_GS = 44; S_NG = 45; S_GI = 46; S_SEG = 47
S_MASK = 48
S_RET = 50
S_INFO = 52; S_V = 53; S_NODE = 54; S_T0 = 55; S_T1 = 56; S_BIG = 57; S_BIG2 = 58; S_T2 = 59
S_M0 = 60; S_M1 = 62; S_EX = 64; S_T3 = 66; S_SG = 67

def pk(a, d, x, y, z):
    a(f'v_pk_fma_f32 v[{d}:{d+1}], v[{x}:{x+1}], v[{y}:{y+1}], v[{z}:{z+1}]')

def edge_ops(a, z, e):
    pk(a, V_T, V_N, e, V_N)
    pk(a, V_N, z, V_DN, V_T)
    pk(a, V_DN, V_DN, e, V_DN)

ZPOS = [V_D0, V_D1, V_D0 + 2, V_D1 + 2]

def gen_k2(a, dbg=0):
    name = 'mpnn_k2_kernel'
    a(kernel_head(name))
    a(f'''
    s_cmp_ge_u32 s2, {NB}
    s_cbranch_scc1 K2_END
    s_load_dwordx2 s[{S_X}:{S_X+1}], s[0:1], 0
    s_load_dwordx2 s[{S_WM}:{S_WM+1}], s[0:1], 32
    s_load_dwordx2 s[{S_OUT}:{S_OUT+1}], s[0:1], 48
    s_load_dwordx2 s[{S_WS}:{S_WS+1}], s[0:1], 64
    v_and_b32 v{V_LANE}, 63, v0
    v_lshrrev_b32 v{V_TMP}, 6, v0
    v_lshlrev_b32 v{V_L4}, 2, v{V_LANE}
    v_readfirstlane_b32 s{S_W}, v{V_TMP}
    v_lshlrev_b32 v{V_L8}, 3, v{V_LANE}
    v_mov_b32 v16, 0
    v_mov_b32 v17, 0
    v_mov_b32 v18, 0
    v_mov_b32 v19, 0
    v_lshlrev_b32 v{V_TMP}, 4, v0
    ds_write_b128 v{V_TMP}, v[16:19]
    ds_write_b128 v{V_TMP}, v[16:19] offset:16384
    ds_write_b128 v{V_TMP}, v[16:19] offset:32768
    s_waitcnt lgkmcnt(0)
    s_barrier
    ''')
    srd(a, S_OFFS, S_WS, S_WS+1, NB*256*4, add=WS_OFFS)
    a(f's_mul_i32 s{S_T1}, s{S_B}, {NPB*256}')
    a(f's_add_u32 s{S_XR}, s{S_X}, s{S_T1}')
    a(f's_addc_u32 s{S_XR+1}, s{S_X+1}, 0')
    a(f's_mov_b32 s{S_XR+2}, {NPB*256}')
    a(f's_mov_b32 s{S_XR+3}, 0x00020000')
    srd(a, S_W3R, S_WM, S_WM+1, 257*256)
    srd(a, S_FR, S_WS, S_WS+1, 3*32768, add=WS_FRAG)
    srd(a, S_REC, S_WS, S_WS+1, NC*EPC*8, add=WS_REC)
    srd(a, S_OR, S_OUT, S_OUT+1, N*256)
    a(f's_add_u32 s{S_P}, s{S_WS}, {WS_P}')
    a(f's_addc_u32 s{S_P+1}, s{S_WS+1}, 0')
    a(f's_or_b32 s{S_P+1}, s{S_P+1}, 0x00040000')
    a(f's_mov_b32 s{S_P+2}, {N*256}')
    a(f's_mov_b32 s{S_P+3}, 0x00800000')
    a(f'''
    v_lshrrev_b32 v16, 2, v0                 ; chunk c
    s_lshl_b32 s{S_T0}, s{S_B}, 10           ; b*1024
    v_lshlrev_b32 v17, 2, v16
    buffer_load_dword v{V_CELL}, v17, s[{S_OFFS}:{S_OFFS+3}], s{S_T0} offen
    v_lshlrev_b32 v18, 4, v0
    buffer_load_dwordx4 v[20:23], v18, s[{S_XR}:{S_XR+3}], 0 offen
    ; w3 row
    v_add_u32 v19, 0x10000, v{V_L4}
    buffer_load_dword v{V_W3P}, v19, s[{S_W3R}:{S_W3R+3}], 0 offen
    s_lshl_b32 s{S_T0}, s{S_W}, 11           ; w*2048
    s_add_u32 s{S_T1}, s{S_T0}, {L_W}
    s_mov_b32 m0, s{S_T1}
    v_lshlrev_b32 v19, 4, v{V_LANE}
    s_add_u32 s{S_T0}, s{S_T0}, 65536
    buffer_load_dwordx4 v19, s[{S_FR}:{S_FR+3}], s{S_T0} offen lds
    s_add_u32 s{S_T1}, s{S_T1}, 1024
    s_mov_b32 m0, s{S_T1}
    s_add_u32 s{S_T0}, s{S_T0}, 1024
    buffer_load_dwordx4 v19, s[{S_FR}:{S_FR+3}], s{S_T0} offen lds
    s_mov_b32 s{S_DONE}, 0
    s_mov_b32 s{S_BIG}, 0x71800000           ; 2^100
    s_mov_b32 s{S_BIG2}, 0x7b800000          ; 2^120
    s_waitcnt vmcnt(4)
    v_cmp_gt_u32 vcc, {NC}, v16
    s_nop 1
    v_cndmask_b32 v{V_CELL}, 0, v{V_CELL}, vcc
    ''')
    a(f'''
    v_lshrrev_b32 v24, 16, v{V_CELL}
    s_nop 1
    v_max_u32_dpp v24, v24, v24 row_shr:1 row_mask:0xf bank_mask:0xf
    s_nop 1
    v_max_u32_dpp v24, v24, v24 row_shr:2 row_mask:0xf bank_mask:0xf
    s_nop 1
    v_max_u32_dpp v24, v24, v24 row_shr:4 row_mask:0xf bank_mask:0xf
    s_nop 1
    v_max_u32_dpp v24, v24, v24 row_shr:8 row_mask:0xf bank_mask:0xf
    s_nop 1
    v_max_u32_dpp v24, v24, v24 row_bcast:15 row_mask:0xa bank_mask:0xf
    s_nop 1
    v_max_u32_dpp v24, v24, v24 row_bcast:31 row_mask:0xc bank_mask:0xf
    ''')
    first = True
    a('K2_ROUND:')
    a(f'''
    v_lshrrev_b32 v25, 16, v{V_CELL}
    v_subrev_u32 v25, s{S_DONE}, v25
    v_max_i32 v25, 0, v25
    v_min_u32 v{V_NT}, {LIM_BIG}, v25
    v_and_b32 v26, 3, v0                     ; sub
    v_and_b32 v27, 0xffff, v{V_CELL}         ; start
    v_add3_u32 v27, v27, v26, s{S_DONE}
    v_lshlrev_b32 v27, 3, v27
    v_lshrrev_b32 v16, 2, v0
    v_mul_u32_u24 v28, {EPC*8}, v16
    v_add_u32 v27, v27, v28
    ''')
    for it in range(5):
        a(f'v_add_u32 v29, {4*it}, v26')
        a(f'v_cmp_lt_u32 vcc, v29, v{V_NT}')
        a(f'v_mov_b32 v31, 0x40000000')
        a(f's_nop 0')
        a(f'v_cndmask_b32 v29, v31, v27, vcc')
        a(f'buffer_load_dwordx2 v[{V_REC+2*it}:{V_REC+2*it+1}], v29, s[{S_REC}:{S_REC+3}], 0 offen offset:{32*it}')
    a(f'''
    v_cmp_eq_u32 vcc, 0, v26
    s_nop 1
    v_cndmask_b32 v30, 0, v{V_NT}, vcc
    ''')
    wave_scan_incl(a, 30)
    a(f'''
    v_mov_b32 v31, {L_MISC}
    v_cmp_eq_u32 vcc, 63, v{V_LANE}
    s_and_saveexec_b64 s[{S_EX}:{S_EX+1}], vcc
    ds_add_u32 v31, v30
    ds_max_u32 v31, v24 offset:4
    s_mov_b64 exec, s[{S_EX}:{S_EX+1}]
    s_cmp_lg_u32 s{S_DONE}, 0
    s_cbranch_scc1 K2_SKIPX
    ''')
    a(f'''
    s_waitcnt vmcnt(8)
    v_lshrrev_b32 v16, 4, v0
    v_and_b32 v17, 15, v0
    v_mul_u32_u24 v16, {XS}, v16
    v_lshl_add_u32 v16, v17, 4, v16
    v_cmp_gt_u32 vcc, 640, v0
    s_and_saveexec_b64 s[{S_EX}:{S_EX+1}], vcc
    ds_write_b128 v16, v[20:23] offset:{L_X}
    s_mov_b64 exec, s[{S_EX}:{S_EX+1}]
    s_cmp_ge_u32 s{S_W}, 8
    s_cbranch_scc1 K2_SKIPX
    s_lshl_b32 s{S_T0}, s{S_W}, 13           ; (M*4+u)*8192
    v_lshlrev_b32 v16, 4, v{V_LANE}
    v_add_u32 v17, 0x1000, v16
    ''')
    for T in range(2):
        for s in range(4):
            r = V_B + (T*4+s)*4
            a(f'buffer_load_dwordx4 v[{r}:{r+3}], v{16+T}, s[{S_FR}:{S_FR+3}], s{S_T0} offen offset:{s*1024}')
    a('K2_SKIPX:')
    a('s_waitcnt lgkmcnt(0)')
    a('s_barrier')
    a(f'''
    v_mov_b32 v31, {L_MISC}
    ds_read_b64 v[16:17], v31
    s_waitcnt lgkmcnt(0)
    v_readfirstlane_b32 s{S_T0}, v16
    v_readfirstlane_b32 s{S_MAXC}, v17
    s_mov_b32 s{S_LIM}, {LIM_BIG}
    s_cmp_gt_u32 s{S_T0}, {CAP_OK}
    s_cselect_b32 s{S_LIM}, {LIM_SMALL}, s{S_LIM}
    v_min_u32 v{V_NT}, s{S_LIM}, v{V_NT}
    v_and_b32 v26, 3, v0
    v_mov_b32 v31, 1
    s_waitcnt vmcnt(0)
    ''')
    for it in range(5):
        a(f'v_and_b32 v{V_TP+it}, 0xfc, v{V_REC+2*it+1}')
        a(f'v_add_u32 v29, {4*it}, v26')
        a(f'v_cmp_lt_u32 vcc, v29, v{V_NT}')
        a(f's_and_saveexec_b64 s[{S_EX}:{S_EX+1}], vcc')
        a(f's_cbranch_execz K2_H{it}')
        a(f'ds_add_rtn_u32 v{V_RANK+it}, v{V_TP+it}, v31 offset:{L_CNT}')
        a(f'K2_H{it}:')
        a(f's_mov_b64 exec, s[{S_EX}:{S_EX+1}]')
    a(f'''
    s_cmp_lg_u32 s{S_DONE}, 0
    s_cbranch_scc1 K2_SKIPG
    s_cmp_ge_u32 s{S_W}, 8
    s_cbranch_scc1 K2_SKIPG
    v_and_b32 v16, 15, v{V_LANE}             ; n
    v_lshrrev_b32 v17, 4, v{V_LANE}          ; q
    v_mul_u32_u24 v18, {XS}, v16
    v_lshl_add_u32 v18, v17, 4, v18          ; n*XS + 16q
    ''')
    XB = 88; ACC = 64+48
    ACCS = [20, 28, 32]
    ACCS = [20, 28, 96+8]
    accb = {0: 20, 1: 28, 2: 104+0}
    acc = {(0,0):20,(0,1):24,(1,0):28,(1,1):32,(2,0):36,(2,1):100}
    xb = {0: 88, 1: 92-4+0, 2: 88}
    xregs = [88, 92, 96, 12]
    for nt in range(3):
        for s in range(4):
            a(f'ds_read_b128 v[{xregs[s]}:{xregs[s]+3}], v18 offset:{L_X + nt*16*XS + 64*s}')
        for T in range(2):
            for r in range(4): a(f'v_mov_b32 v{acc[(nt,T)]+r}, 0')
        for s in range(4):
            a(f's_waitcnt lgkmcnt({3-s})')
            for T in range(2):
                w = V_B + (T*4+s)*4
                d = acc[(nt,T)]
                a(f'v_mfma_f32_16x16x32_bf16 v[{d}:{d+3}], v[{w}:{w+3}], v[{xregs[s]}:{xregs[s]+3}], v[{d}:{d+3}]')
    a(f'''
    s_and_b32 s{S_T0}, s{S_W}, 3
    s_lshl_b32 s{S_T0}, s{S_T0}, 7           ; u*32*4
    s_cmp_ge_u32 s{S_W}, 4
    s_mov_b32 s{S_T1}, {L_Q}
    s_cselect_b32 s{S_T1}, {L_U}, s{S_T1}
    s_add_u32 s{S_T0}, s{S_T0}, s{S_T1}
    v_mul_u32_u24 v18, {ROWS}, v16
    v_lshl_add_u32 v18, v17, 5, v18          ; + 8q*4
    v_add_u32 v18, s{S_T0}, v18
    s_mov_b32 s{S_T1}, {NLOG2E:#x}
    s_cmp_ge_u32 s{S_W}, 4
    s_cselect_b32 s{S_T1}, 1.0, s{S_T1}
    s_nop 4
    ''')
    for nt in range(3):
        for T in range(2):
            for r in range(4): a(f'v_mul_f32 v{acc[(nt,T)]+r}, s{S_T1}, v{acc[(nt,T)]+r}')
        if nt == 2:
            a(f'v_cmp_gt_u32 vcc, 8, v16')
            a(f's_and_saveexec_b64 s[{S_EX}:{S_EX+1}], vcc')
        for T in range(2):
            d = acc[(nt,T)]
            a(f'ds_write_b128 v18, v[{d}:{d+3}] offset:{nt*16*ROWS + 16*T}')
        if nt == 2: a(f's_mov_b64 exec, s[{S_EX}:{S_EX+1}]')
    a('K2_SKIPG:')
    a('s_waitcnt lgkmcnt(0)')
    a('s_barrier')
    a(f'''
    ds_read_b32 v16, v{V_L4} offset:{L_CNT}
    s_waitcnt lgkmcnt(0)
    v_add_u32 v17, 3, v16
    v_and_b32 v17, -4, v17                   ; padded
    v_mov_b32 v18, v17
    ''')
    wave_scan_incl(a, 18)
    a(f'''
    v_readlane_b32 s{S_G}, v18, 63
    v_sub_u32 v18, v18, v17                  ; ps
    v_lshl_or_b32 v18, v16, 16, v18
    s_lshr_b32 s{S_G}, s{S_G}, 2             ; G groups
    s_min_u32 s{S_G}, s{S_G}, {LC//4}
    v_and_b32 v26, 3, v0
    ''')
    for it in range(5):
        a(f'ds_bpermute_b32 v{20+it}, v{V_TP+it}, v18')
    for it in range(5):
        a(f'v_add_u32 v29, {4*it}, v26')
        a(f'v_cmp_lt_u32 vcc, v29, v{V_NT}')
        a(f's_and_saveexec_b64 s[{S_EX}:{S_EX+1}], vcc')
        a(f's_cbranch_execz K2_S{it}')
        a(f's_waitcnt lgkmcnt(0)')
        t = 20 + it; rk = V_RANK + it; d0 = V_REC + 2*it; d1 = d0 + 1
        a(f'v_add_u32_sdwa v27, v{t}, v{rk} dst_sel:DWORD dst_unused:UNUSED_PAD src0_sel:WORD_0 src1_sel:DWORD')
        a(f'v_lshlrev_b32 v28, 2, v27')
        a(f'ds_write_b32 v28, v{d0} offset:{L_OFF}')
        a(f'v_and_b32 v30, -16, v28')
        a(f'v_add_u32 v30, v30, v28')
        a(f'ds_write_b16_d16_hi v30, v{d1} offset:{L_EIMG}')
        a(f'ds_write_b16_d16_hi v30, v{d1} offset:{L_EIMG+18}')
        a(f'v_and_b32 v31, 3, v{rk}')
        a(f'v_cmp_eq_u32 vcc, 0, v31')
        a(f's_and_b64 exec, exec, vcc')
        a(f'v_sub_u32_sdwa v31, v{t}, v{rk} dst_sel:DWORD dst_unused:UNUSED_PAD src0_sel:WORD_1 src1_sel:DWORD')
        a(f'v_lshl_or_b32 v31, v31, 8, v{V_TP+it}')
        a(f'ds_write_b32 v27, v31 offset:{L_INFO}')
        a(f'K2_S{it}:')
        a(f's_mov_b64 exec, s[{S_EX}:{S_EX+1}]')
    a(f'''
    v_and_b32 v16, 15, v{V_LANE}             ; m
    v_lshrrev_b32 v17, 4, v{V_LANE}          ; q'
    v_lshrrev_b32 v18, 2, v16                ; q(m)
    v_cmp_eq_u32 s[{S_M0}:{S_M0+1}], v17, v18
    v_and_b32 v19, 1, v16                    ; h
    v_bfe_u32 v20, v16, 1, 1                 ; i
    v_mov_b32 v21, 0x3f80
    v_mov_b32 v22, 0x3f800000
    v_cmp_eq_u32 vcc, 0, v19
    s_nop 1
    v_cndmask_b32 v21, v22, v21, vcc
    v_cndmask_b32 v21, 0, v21, s[{S_M0}:{S_M0+1}]
    v_cmp_eq_u32 vcc, 0, v20
    s_nop 1
    v_cndmask_b32 v{V_A[0]}, 0, v21, vcc     ; S0: i==0
    v_cndmask_b32 v{V_A[0]+1}, v21, 0, vcc   ; S1: i==1
    ''')
    a('K2_DBG1:')
    a(f'''
    v_mov_b32 v{V_A[1]}, v{V_A[0]}
    v_mov_b32 v{V_A[1]+1}, v{V_A[0]+1}
    v_lshlrev_b32 v19, 4, v19                ; h*16
    v_lshl_add_u32 v19, v20, 3, v19          ; + i*8
    v_add_u32 v19, {L_EIMG}, v19
    v_mov_b32 v22, {L_ZERO}
    v_cndmask_b32 v{V_EA}, v22, v19, s[{S_M0}:{S_M0+1}]
    v_mov_b32 v22, 128
    v_cndmask_b32 v{V_EINC}, 0, v22, s[{S_M0}:{S_M0+1}]
    v_lshlrev_b32 v22, 16, v{V_W3P}
    v_and_b32 v23, 0xffff0000, v{V_W3P}
    s_mov_b32 s{S_T0}, {NLOG2E:#x}
    v_mul_f32 v22, s{S_T0}, v22
    v_mul_f32 v23, s{S_T0}, v23
    v_cvt_pk_bf16_f32 v{V_W3}, v22, v23
    ''')
    for k in range(8):
        b = V_B + 4*k
        if k % 2 == 0:
            a(f'v_mov_b32 v{b+2}, v{V_W3}'); a(f'v_mov_b32 v{b+3}, 0')
        else:
            a(f'v_mov_b32 v{b+2}, 0'); a(f'v_mov_b32 v{b+3}, v{V_W3}')
    a(f'v_mov_b32 v{V_SB+2}, v{V_W3}'); a(f'v_mov_b32 v{V_SB+3}, 0')
    a(f'v_mov_b32 v{V_SB+6}, 0'); a(f'v_mov_b32 v{V_SB+7}, v{V_W3}')
    a(f'v_mov_b32 v{V_SA}, v{V_A[0]}'); a(f'v_mov_b32 v{V_SA+1}, v{V_A[0]+1}')
    a('s_waitcnt lgkmcnt(0)')
    a('s_barrier')
    a(f'''
    s_mul_i32 s{S_GS}, s{S_G}, s{S_W}
    s_lshr_b32 s{S_GS}, s{S_GS}, 4
    s_add_u32 s{S_T0}, s{S_W}, 1
    s_mul_i32 s{S_T0}, s{S_G}, s{S_T0}
    s_lshr_b32 s{S_T0}, s{S_T0}, 4
    s_sub_u32 s{S_NG}, s{S_T0}, s{S_GS}
    s_cmp_eq_u32 s{S_NG}, 0
    s_cbranch_scc1 K2_DONE
    s_lshl_b32 s{S_T0}, s{S_GS}, 2
    v_add_u32 v16, s{S_T0}, v{V_L4}
    ds_read_b32 v{V_INFO}, v16 offset:{L_INFO}
    ds_read_b32 v{V_INFON}, v16 offset:{L_INFO+4}
    s_lshl_b32 s{S_T0}, s{S_GS}, 4
    s_add_u32 s{S_T0}, s{S_T0}, {L_OFF}
    v_mov_b32 v{V_OFFA}, s{S_T0}
    s_lshl_b32 s{S_T0}, s{S_GS}, 5
    v_mov_b32 v16, s{S_T0}
    v_cndmask_b32 v16, 0, v16, s[{S_M0}:{S_M0+1}]
    v_add_u32 v{V_EA}, v{V_EA}, v16
    ''')
    for g in range(4):
        a(f'ds_read_b128 v[{16+4*g}:{19+4*g}], v{V_OFFA} offset:{16*g}')
    a(f'ds_read_b128 v[{V_OFF[0]}:{V_OFF[0]+3}], v{V_OFFA} offset:64')
    a(f'ds_read_b64 v[{V_A[0]+2}:{V_A[0]+3}], v{V_EA}')
    a('s_waitcnt lgkmcnt(2)')
    def row_loads(slot, offbase):
        dst = [V_B + 8*slot, V_B + 8*slot + 4, V_B + 8*slot + 1, V_B + 8*slot + 5]
        for p in range(4):
            a(f'buffer_load_dword v{dst[p]}, v{offbase+p}, s[{S_P}:{S_P+3}], 0 offen')
    for g in range(4): row_loads(g, 16 + 4*g)
    a(f'''
    v_lshrrev_b32 v16, 8, v{V_INFO}          ; rem
    v_add_u32 v16, -1, v16
    v_bfe_u32 v16, v16, 2, 4
    v_cmp_eq_u32 s[{S_MASK}:{S_MASK+1}], 0, v16
    s_sub_u32 s{S_T0}, s{S_NG}, 1
    s_bitset1_b64 s[{S_MASK}:{S_MASK+1}], s{S_T0}
    v_readfirstlane_b32 s{S_INFO}, v{V_INFO}
    s_and_b32 s{S_NODE}, s{S_INFO}, 0xfc     ; node*4
    s_mul_i32 s{S_T0}, s{S_NODE}, {ROWS//4}
    v_add_u32 v{V_AGGA}, s{S_T0}, v{V_L4}
    v_add_u32 v{V_QA}, s{S_T0}, v{V_L8}
    v_add_u32 v{V_QA}, {L_Q}, v{V_QA}
    ds_read2_b64 v[{V_C}:{V_C+3}], v{V_QA} offset0:0 offset1:0
    v_mov_b32 v{V_N}, 0
    v_mov_b32 v{V_N+1}, 0
    v_mov_b32 v{V_DN}, 1.0
    v_mov_b32 v{V_DN+1}, 1.0
    s_mov_b32 s{S_GI}, 0
    s_mov_b32 s{S_SEG}, 0
    ''')
    a('K2_LOOP:')
    for s in range(4):
        A_ = V_A[s % 2]; An = V_A[(s+1) % 2]; O = V_OFF[s % 2]; On = V_OFF[(s+1) % 2]
        b0 = V_B + 8*s; b1 = b0 + 4
        a('s_waitcnt vmcnt(12) lgkmcnt(0)')
        a(f'v_mfma_f32_16x16x32_bf16 v[{V_D0}:{V_D0+3}], v[{A_}:{A_+3}], v[{b0}:{b0+3}], v[{V_C}:{V_C+3}]')
        a(f'v_mfma_f32_16x16x32_bf16 v[{V_D1}:{V_D1+3}], v[{A_}:{A_+3}], v[{b1}:{b1+3}], v[{V_C}:{V_C+3}]')
        row_loads(s, O)
        a(f'ds_read_b128 v[{On}:{On+3}], v{V_OFFA} offset:{16*(s+5)}')
        a(f'ds_read_b64 v[{An+2}:{An+3}], v{V_EA} offset:{32*(s+1)}')
        a(f's_bitcmp1_b64 s[{S_MASK}:{S_MASK+1}], s{S_GI}')
        a(f's_cbranch_scc1 K2_SPEC{s}')
        for p in range(4):
            a(f'v_exp_f32 v{V_E+2*p}, v{ZPOS[p]}')
            a(f'v_exp_f32 v{V_E+2*p+1}, v{ZPOS[p]+1}')
        for p in range(4):
            edge_ops(a, ZPOS[p], V_E + 2*p)
        a(f'K2_NEXT{s}:')
        a(f's_add_u32 s{S_GI}, s{S_GI}, 1')
    a(f'v_add_u32 v{V_OFFA}, 64, v{V_OFFA}')
    a(f'v_add_u32 v{V_EA}, v{V_EA}, v{V_EINC}')
    a('s_branch K2_LOOP')
    for s in range(4):
        a(f'K2_SPEC{s}:')
        a(f's_mov_b32 s{S_RET}, {s}')
        a(f's_branch K2_HANDLER')
    a('K2_HANDLER:')
    a(f'''
    v_readlane_b32 s{S_INFO}, v{V_INFO}, s{S_GI}
    v_exp_f32 v{V_E}, v{ZPOS[0]}
    v_exp_f32 v{V_E+1}, v{ZPOS[0]+1}
    s_lshr_b32 s{S_V}, s{S_INFO}, 8
    s_min_u32 s{S_V}, s{S_V}, 4
    s_cmp_lt_u32 s{S_V}, 2
    ''')
    edge_ops(a, ZPOS[0], V_E)
    a('s_cbranch_scc1 K2_FLUSH')
    for p in (1, 2, 3):
        a(f'v_exp_f32 v{V_E}, v{ZPOS[p]}')
        a(f'v_exp_f32 v{V_E+1}, v{ZPOS[p]+1}')
        a(f's_cmp_lt_u32 s{S_V}, {p+2}')
        edge_ops(a, ZPOS[p], V_E)
        if p < 3: a('s_cbranch_scc1 K2_FLUSH')
    a('K2_FLUSH:')
    a(f'''
    v_rcp_f32 v{V_R}, v{V_DN}
    v_rcp_f32 v{V_R+1}, v{V_DN+1}
    v_cmp_ngt_f32 vcc, s{S_BIG}, v{V_DN}
    v_cmp_ngt_f32 s[{S_M1}:{S_M1+1}], s{S_BIG}, v{V_DN+1}
    v_pk_mul_f32 v[{V_R}:{V_R+1}], v[{V_N}:{V_N+1}], v[{V_R}:{V_R+1}]
    s_or_b64 s[{S_M1}:{S_M1+1}], s[{S_M1}:{S_M1+1}], vcc
    v_cmp_ngt_f32 vcc, s{S_BIG2}, |v{V_R}|
    s_or_b64 s[{S_M1}:{S_M1+1}], s[{S_M1}:{S_M1+1}], vcc
    v_cmp_ngt_f32 vcc, s{S_BIG2}, |v{V_R+1}|
    s_or_b64 s[{S_M1}:{S_M1+1}], s[{S_M1}:{S_M1+1}], vcc
    s_cbranch_scc1 K2_SLOW
    ''')
    a('K2_ADD:')
    a(f'''
    ds_add_f32 v{V_AGGA}, v{V_R} offset:{L_AGG}
    ds_add_f32 v{V_AGGA}, v{V_R+1} offset:{L_AGG+256}
    v_mov_b32 v{V_N}, 0
    v_mov_b32 v{V_N+1}, 0
    v_mov_b32 v{V_DN}, 1.0
    v_mov_b32 v{V_DN+1}, 1.0
    s_add_u32 s{S_SEG}, s{S_GI}, 1
    s_cmp_eq_u32 s{S_SEG}, s{S_NG}
    s_cbranch_scc1 K2_DONE
    v_readlane_b32 s{S_INFO}, v{V_INFON}, s{S_GI}
    s_and_b32 s{S_T0}, s{S_INFO}, 0xfc
    s_cmp_eq_u32 s{S_T0}, s{S_NODE}
    s_cbranch_scc1 K2_HRET
    s_mov_b32 s{S_NODE}, s{S_T0}
    s_mul_i32 s{S_T0}, s{S_NODE}, {ROWS//4}
    v_add_u32 v{V_AGGA}, s{S_T0}, v{V_L4}
    v_add_u32 v{V_QA}, s{S_T0}, v{V_L8}
    v_add_u32 v{V_QA}, {L_Q}, v{V_QA}
    ds_read2_b64 v[{V_C}:{V_C+3}], v{V_QA} offset0:0 offset1:0
    ''')
    a('K2_HRET:')
    for s_ in range(3):
        a(f's_cmp_eq_u32 s{S_RET}, {s_}')
        a(f's_cbranch_scc1 K2_NEXT{s_}')
    a('s_branch K2_NEXT3')
    a('K2_SLOW:')
    a(f'''
    v_mov_b32 v{V_SACC}, 0
    v_mov_b32 v{V_SACC+1}, 0
    s_mov_b32 s{S_SG}, s{S_SEG}
    ''')
    a('K2_SLOOP:')
    a(f'''
    s_add_u32 s{S_T0}, s{S_GS}, s{S_SG}
    s_lshl_b32 s{S_T1}, s{S_T0}, 4
    s_add_u32 s{S_T1}, s{S_T1}, {L_OFF}
    v_mov_b32 v{V_TMP}, s{S_T1}
    ds_read_b128 v[{V_SOFF}:{V_SOFF+3}], v{V_TMP}
    v_and_b32 v{V_TMP+1}, 15, v{V_LANE}
    v_lshrrev_b32 v{V_TMP+2}, 4, v{V_LANE}
    v_lshrrev_b32 v{V_TMP+3}, 2, v{V_TMP+1}
    v_cmp_eq_u32 vcc, v{V_TMP+2}, v{V_TMP+3}
    v_and_b32 v{V_TMP+2}, 1, v{V_TMP+1}
    v_lshlrev_b32 v{V_TMP+2}, 4, v{V_TMP+2}
    v_bfe_u32 v{V_TMP+3}, v{V_TMP+1}, 1, 1
    v_lshl_add_u32 v{V_TMP+2}, v{V_TMP+3}, 3, v{V_TMP+2}
    s_lshl_b32 s{S_T1}, s{S_T0}, 5
    s_add_u32 s{S_T1}, s{S_T1}, {L_EIMG}
    v_add_u32 v{V_TMP+2}, s{S_T1}, v{V_TMP+2}
    v_mov_b32 v{V_TMP+3}, {L_ZERO}
    v_cndmask_b32 v{V_TMP+2}, v{V_TMP+3}, v{V_TMP+2}, vcc
    ds_read_b64 v[{V_SA+2}:{V_SA+3}], v{V_TMP+2}
    s_waitcnt lgkmcnt(0)
    buffer_load_dword v{V_SB}, v{V_SOFF}, s[{S_P}:{S_P+3}], 0 offen
    buffer_load_dword v{V_SB+4}, v{V_SOFF+1}, s[{S_P}:{S_P+3}], 0 offen
    buffer_load_dword v{V_SB+1}, v{V_SOFF+2}, s[{S_P}:{S_P+3}], 0 offen
    buffer_load_dword v{V_SB+5}, v{V_SOFF+3}, s[{S_P}:{S_P+3}], 0 offen
    s_waitcnt vmcnt(0)
    v_mfma_f32_16x16x32_bf16 v[{V_D0}:{V_D0+3}], v[{V_SA}:{V_SA+3}], v[{V_SB}:{V_SB+3}], v[{V_C}:{V_C+3}]
    v_mfma_f32_16x16x32_bf16 v[{V_D1}:{V_D1+3}], v[{V_SA}:{V_SA+3}], v[{V_SB+4}:{V_SB+7}], v[{V_C}:{V_C+3}]
    s_mov_b32 s{S_T2}, 4
    s_cmp_eq_u32 s{S_SG}, s{S_GI}
    s_cselect_b32 s{S_T2}, s{S_V}, s{S_T2}
    s_nop 7
    ''')
    for p in range(4):
        z = ZPOS[p]
        a(f'''
        v_exp_f32 v{V_E}, v{z}
        v_exp_f32 v{V_E+1}, v{z+1}
        s_nop 0
        v_add_f32 v{V_E}, 1.0, v{V_E}
        v_add_f32 v{V_E+1}, 1.0, v{V_E+1}
        v_rcp_f32 v{V_E}, v{V_E}
        v_rcp_f32 v{V_E+1}, v{V_E+1}
        s_cmp_lt_u32 s{S_T2}, {p+2}
        v_fma_f32 v{V_SACC}, v{z}, v{V_E}, v{V_SACC}
        v_fma_f32 v{V_SACC+1}, v{z+1}, v{V_E+1}, v{V_SACC+1}
        ''')
        if p < 3: a('s_cbranch_scc1 K2_SNEXT')
    a('K2_SNEXT:')
    a(f'''
    s_add_u32 s{S_SG}, s{S_SG}, 1
    s_cmp_le_u32 s{S_SG}, s{S_GI}
    s_cbranch_scc1 K2_SLOOP
    v_mov_b32 v{V_R}, v{V_SACC}
    v_mov_b32 v{V_R+1}, v{V_SACC+1}
    s_branch K2_ADD
    ''')
    a('K2_DONE:')
    a('s_waitcnt vmcnt(0) lgkmcnt(0)')
    a('s_barrier')
    a(f'''
    s_add_u32 s{S_DONE}, s{S_DONE}, s{S_LIM}
    s_cmp_ge_u32 s{S_DONE}, s{S_MAXC}
    s_cbranch_scc1 K2_EPI
    v_mov_b32 v16, 0
    v_cmp_gt_u32 vcc, 64, v0
    s_and_saveexec_b64 s[{S_EX}:{S_EX+1}], vcc
    ds_write_b32 v{V_L4}, v16 offset:{L_CNT}
    s_mov_b64 exec, s[{S_EX}:{S_EX+1}]
    v_mov_b32 v17, {L_MISC}
    ds_write_b32 v17, v16
    v_mov_b32 v24, 0
    s_waitcnt lgkmcnt(0)
    s_barrier
    s_branch K2_ROUND
    ''')
    a('K2_EPI:')
    a(f'''
    v_lshrrev_b32 v16, 4, v0                 ; row
    v_and_b32 v17, 15, v0                    ; piece
    v_mul_u32_u24 v18, {ROWS}, v16
    v_lshl_add_u32 v18, v17, 5, v18
    v_mul_u32_u24 v19, {XS}, v16
    v_lshl_add_u32 v19, v17, 4, v19
    v_cmp_gt_u32 vcc, 640, v0
    s_and_saveexec_b64 s[{S_EX}:{S_EX+1}], vcc
    s_cbranch_execz K2_E1
    ds_read_b128 v[20:23], v18 offset:{L_AGG}
    ds_read_b128 v[24:27], v18 offset:{L_AGG+16}
    s_mov_b32 s{S_T0}, {NLN2:#x}
    s_waitcnt lgkmcnt(0)
    ''')
    for r in range(8): a(f'v_mul_f32 v{20+r}, s{S_T0}, v{20+r}')
    for d in range(4): a(f'v_cvt_pk_bf16_f32 v{28+d}, v{20+2*d}, v{21+2*d}')
    a(f'ds_write_b128 v19, v[28:31] offset:{L_X}')
    a('K2_E1:')
    a(f's_mov_b64 exec, s[{S_EX}:{S_EX+1}]')
    a('s_waitcnt lgkmcnt(0)')
    a('s_barrier')
    a(f'''
    s_cmp_ge_u32 s{S_W}, 12
    s_cbranch_scc1 K2_END
    s_and_b32 s{S_T0}, s{S_W}, 3             ; u
    s_lshr_b32 s{S_T1}, s{S_W}, 2            ; nt
    v_and_b32 v16, 15, v{V_LANE}             ; n
    v_lshrrev_b32 v17, 4, v{V_LANE}          ; q
    s_lshl_b32 s{S_T2}, s{S_T1}, 4           ; 16 nt
    v_add_u32 v16, s{S_T2}, v16
    v_mul_u32_u24 v18, {XS}, v16
    v_lshl_add_u32 v18, v17, 4, v18
    s_lshl_b32 s{S_T2}, s{S_T0}, 13
    s_add_u32 s{S_T2}, s{S_T2}, {L_W}
    v_lshlrev_b32 v19, 4, v{V_LANE}
    v_add_u32 v19, s{S_T2}, v19
    v_mul_u32_u24 v20, {ROWS}, v16
    v_lshl_add_u32 v20, v17, 5, v20
    s_lshl_b32 s{S_T2}, s{S_T0}, 7
    s_add_u32 s{S_T2}, s{S_T2}, {L_U}
    v_add_u32 v20, s{S_T2}, v20              ; U addr
    ds_read_b128 v[24:27], v20
    ds_read_b128 v[28:31], v20 offset:16
    ''')
    for s in range(4):
        a(f'ds_read_b128 v[{32+4*s}:{35+4*s}], v18 offset:{L_X + 64*s}')
    for T in range(2):
        for s in range(4):
            r = 56 + (T*4+s)*4
            a(f'ds_read_b128 v[{r}:{r+3}], v19 offset:{(T*4+s)*1024}')
    a('s_waitcnt lgkmcnt(0)')
    for s in range(4):
        for T in range(2):
            w = 56 + (T*4+s)*4; d = 24 + 4*T
            a(f'v_mfma_f32_16x16x32_bf16 v[{d}:{d+3}], v[{w}:{w+3}], v[{32+4*s}:{35+4*s}], v[{d}:{d+3}]')
    a(f'''
    s_mul_i32 s{S_T2}, s{S_B}, {NPB}
    v_add_u32 v21, s{S_T2}, v16
    v_lshlrev_b32 v21, 8, v21
    v_lshl_add_u32 v21, v17, 4, v21          ; + 8q*2
    s_lshl_b32 s{S_T2}, s{S_T0}, 6           ; 32u*2
    s_mov_b32 s{S_T1}, {NLOG2E:#x}
    s_nop 4
    ''')
    for r in range(8): a(f'v_mul_f32 v{32+r}, s{S_T1}, v{24+r}')
    for r in range(8): a(f'v_exp_f32 v{32+r}, v{32+r}')
    a('s_nop 0')
    for r in range(8): a(f'v_add_f32 v{32+r}, 1.0, v{32+r}')
    for r in range(8): a(f'v_rcp_f32 v{32+r}, v{32+r}')
    a('s_nop 0')
    for r in range(8): a(f'v_mul_f32 v{32+r}, v{24+r}, v{32+r}')
    for d in range(4): a(f'v_cvt_pk_bf16_f32 v{40+d}, v{32+2*d}, v{33+2*d}')
    a(f'''
    v_cmp_gt_u32 vcc, {NPB}, v16
    s_and_saveexec_b64 s[{S_EX}:{S_EX+1}], vcc
    s_cbranch_execz K2_END
    buffer_store_dwordx4 v[40:43], v21, s[{S_OR}:{S_OR+3}], s{S_T2} offen
    ''')
    a('K2_END:')
    a('s_endpgm')
    a(kernel_desc(name, NVGPR))
    return name
```

```python
import sys
from common import *
import k1, k2
a = Asm()
a.l.append(HDR)
a.l.append(f'; @launch kernel=mpnn_k1_kernel grid=({k1.K1_GRID},1,1) block=(256,1,1) lds={k1.K1_LDS}')
a.l.append(f'; @launch kernel=mpnn_k2_kernel grid=({NB},1,1) block=(1024,1,1) lds={k2.K2_LDS}')
a.l.append('.amdgcn_target "amdgcn-amd-amdhsa--gfx950"')
a.l.append('.text')
k1.gen_k1(a)
k2.gen_k2(a)
out = sys.argv[1] if len(sys.argv) > 1 else 'all.s'
open(out,'w').write(a.text())
```

```python
from common import *
import os
EXP = os.environ.get('EXP','')

LC = 2048
L_OFF  = 0
L_EIMG = L_OFF + (LC + 64) * 4
L_INFO = L_EIMG + (LC // 4 + 8) * 32
L_CNT  = L_INFO + (LC // 4 + 80) * 4
L_ZERO = L_CNT + 256
L_MISC = L_ZERO + 256
L_AGG  = L_MISC + 64
ROWS = 528
L_X    = L_AGG + 40 * ROWS
XS = 272
L_Q    = L_X + 48 * XS
L_U    = L_Q + 40 * ROWS
L_W    = L_U + 40 * ROWS
K2_LDS = L_W + 32768
assert L_X == 49152 and L_X % 16 == 0 and L_W % 16 == 0
LIM_BIG = 20
LIM_SMALL = 7
CAP_OK = LC - 3 * NPB

V_TID, V_LANE, V_OFFA, V_EA, V_EINC, V_AGGA, V_QA, V_INFO, V_INFON, V_L4, V_L8, V_CELL = range(12)
V_C = 12; V_D0 = 16; V_D1 = 20; V_E = 24; V_N = 32; V_DN = 34; V_T = 36; V_R = 38
V_A = [40, 44]; V_OFF = [48, 52]; V_B = 56
V_SOFF = 88; V_SA = 92; V_SB = 96; V_SACC = 104; V_W3 = 106
V_TMP = 107
NVGPR = 112
V_REC = 40; V_RANK = 50; V_NT = 55; V_TP = 104
V_W3P = 111
S_B = 2; S_W = 3
S_X = 4; S_WM = 6; S_OUT = 8; S_WS = 10
S_P = 12
S_REC = 16; S_OFFS = 20; S_XR = 24; S_FR = 28; S_OR = 32; S_W3R = 36
S_DONE = 40; S_MAXC = 41; S_LIM = 42; S_G = 43; S_GS = 44; S_NG = 45; S_GI = 46; S_SEG = 47
S_MASK = 48
S_RET = 50
S_INFO = 52; S_V = 53; S_NODE = 54; S_T0 = 55; S_T1 = 56; S_BIG = 57; S_BIG2 = 58; S_T2 = 59
S_M0 = 60; S_M1 = 62; S_EX = 64; S_T3 = 66; S_SG = 67

def pk(a, d, x, y, z):
    a(f'v_pk_fma_f32 v[{d}:{d+1}], v[{x}:{x+1}], v[{y}:{y+1}], v[{z}:{z+1}]')

def edge_ops(a, z, e):
    pk(a, V_T, V_N, e, V_N)
    pk(a, V_N, z, V_DN, V_T)
    pk(a, V_DN, V_DN, e, V_DN)

ZPOS = [V_D0, V_D1, V_D0 + 2, V_D1 + 2]

STAMPS = []
def stamp(a, dbg, tag):
    if not dbg: return
    k = len(STAMPS); STAMPS.append(tag)
    a(f's_memtime s[{72+2*k}:{73+2*k}]')

def gen_k2(a, dbg=0):
    name = 'mpnn_k2_kernel'
    STAMPS.clear()
    a(kernel_head(name))
    if dbg:
        a('s_memtime s[70:71]')
        a('s_memrealtime s[96:97]')
        a('s_mov_b32 s98, 0')
        a('s_mov_b32 s99, 0')
    a(f'''
    s_cmp_ge_u32 s2, {NB}
    s_cbranch_scc1 K2_END
    s_load_dwordx2 s[{S_X}:{S_X+1}], s[0:1], 0
    s_load_dwordx2 s[{S_WM}:{S_WM+1}], s[0:1], 32
    s_load_dwordx2 s[{S_OUT}:{S_OUT+1}], s[0:1], 48
    s_load_dwordx2 s[{S_WS}:{S_WS+1}], s[0:1], 64
    v_and_b32 v{V_LANE}, 63, v0
    v_lshrrev_b32 v{V_TMP}, 6, v0
    v_lshlrev_b32 v{V_L4}, 2, v{V_LANE}
    v_readfirstlane_b32 s{S_W}, v{V_TMP}
    v_lshlrev_b32 v{V_L8}, 3, v{V_LANE}
    v_mov_b32 v16, 0
    v_mov_b32 v17, 0
    v_mov_b32 v18, 0
    v_mov_b32 v19, 0
    v_lshlrev_b32 v{V_TMP}, 4, v0
    ds_write_b128 v{V_TMP}, v[16:19]
    ds_write_b128 v{V_TMP}, v[16:19] offset:16384
    ds_write_b128 v{V_TMP}, v[16:19] offset:32768
    s_waitcnt lgkmcnt(0)
    s_barrier
    ''')
    stamp(a, dbg, 'init')
    srd(a, S_OFFS, S_WS, S_WS+1, NB*256*4, add=WS_OFFS)
    a(f's_mul_i32 s{S_T1}, s{S_B}, {NPB*256}')
    a(f's_add_u32 s{S_XR}, s{S_X}, s{S_T1}')
    a(f's_addc_u32 s{S_XR+1}, s{S_X+1}, 0')
    a(f's_mov_b32 s{S_XR+2}, {NPB*256}')
    a(f's_mov_b32 s{S_XR+3}, 0x00020000')
    srd(a, S_W3R, S_WM, S_WM+1, 257*256)
    srd(a, S_FR, S_WS, S_WS+1, 3*32768, add=WS_FRAG)
    srd(a, S_REC, S_WS, S_WS+1, NC*EPC*8, add=WS_REC)
    srd(a, S_OR, S_OUT, S_OUT+1, N*256)
    a(f's_add_u32 s{S_P}, s{S_WS}, {WS_P}')
    a(f's_addc_u32 s{S_P+1}, s{S_WS+1}, 0')
    a(f's_or_b32 s{S_P+1}, s{S_P+1}, 0x00040000')
    a(f's_mov_b32 s{S_P+2}, {N*256}')
    a(f's_mov_b32 s{S_P+3}, 0x00800000')
    a(f'''
    v_lshrrev_b32 v16, 2, v0                 ; chunk c
    s_lshl_b32 s{S_T0}, s{S_B}, 10           ; b*1024
    v_lshlrev_b32 v17, 2, v16
    buffer_load_dword v{V_CELL}, v17, s[{S_OFFS}:{S_OFFS+3}], s{S_T0} offen
    v_lshlrev_b32 v18, 4, v0
    buffer_load_dwordx4 v[20:23], v18, s[{S_XR}:{S_XR+3}], 0 offen
    ; w3 row
    v_add_u32 v19, 0x10000, v{V_L4}
    buffer_load_dword v{V_W3P}, v19, s[{S_W3R}:{S_W3R+3}], 0 offen
    s_lshl_b32 s{S_T0}, s{S_W}, 11           ; w*2048
    s_add_u32 s{S_T1}, s{S_T0}, {L_W}
    s_mov_b32 m0, s{S_T1}
    v_lshlrev_b32 v19, 4, v{V_LANE}
    s_add_u32 s{S_T0}, s{S_T0}, 65536
    buffer_load_dwordx4 v19, s[{S_FR}:{S_FR+3}], s{S_T0} offen lds
    s_add_u32 s{S_T1}, s{S_T1}, 1024
    s_mov_b32 m0, s{S_T1}
    s_add_u32 s{S_T0}, s{S_T0}, 1024
    buffer_load_dwordx4 v19, s[{S_FR}:{S_FR+3}], s{S_T0} offen lds
    s_mov_b32 s{S_DONE}, 0
    s_mov_b32 s{S_BIG}, 0x71800000           ; 2^100
    s_mov_b32 s{S_BIG2}, 0x7b800000          ; 2^120
    s_waitcnt vmcnt(4)
    v_cmp_gt_u32 vcc, {NC}, v16
    s_nop 1
    v_cndmask_b32 v{V_CELL}, 0, v{V_CELL}, vcc
    ''')
    a(f'''
    v_lshrrev_b32 v24, 16, v{V_CELL}
    s_nop 1
    v_max_u32_dpp v24, v24, v24 row_shr:1 row_mask:0xf bank_mask:0xf
    s_nop 1
    v_max_u32_dpp v24, v24, v24 row_shr:2 row_mask:0xf bank_mask:0xf
    s_nop 1
    v_max_u32_dpp v24, v24, v24 row_shr:4 row_mask:0xf bank_mask:0xf
    s_nop 1
    v_max_u32_dpp v24, v24, v24 row_shr:8 row_mask:0xf bank_mask:0xf
    s_nop 1
    v_max_u32_dpp v24, v24, v24 row_bcast:15 row_mask:0xa bank_mask:0xf
    s_nop 1
    v_max_u32_dpp v24, v24, v24 row_bcast:31 row_mask:0xc bank_mask:0xf
    ''')
    first = True
    stamp(a, dbg, 'offs')
    a('K2_ROUND:')
    a(f'''
    v_lshrrev_b32 v25, 16, v{V_CELL}
    v_subrev_u32 v25, s{S_DONE}, v25
    v_max_i32 v25, 0, v25
    v_min_u32 v{V_NT}, {LIM_BIG}, v25
    v_and_b32 v26, 3, v0                     ; sub
    v_and_b32 v27, 0xffff, v{V_CELL}         ; start
    v_add3_u32 v27, v27, v26, s{S_DONE}
    v_lshlrev_b32 v27, 3, v27
    v_lshrrev_b32 v16, 2, v0
    v_mul_u32_u24 v28, {EPC*8}, v16
    v_add_u32 v27, v27, v28
    ''')
    for it in range(5):
        a(f'v_add_u32 v29, {4*it}, v26')
        a(f'v_cmp_lt_u32 vcc, v29, v{V_NT}')
        a(f'v_mov_b32 v31, 0x40000000')
        a(f's_nop 0')
        a(f'v_cndmask_b32 v29, v31, v27, vcc')
        a(f'buffer_load_dwordx2 v[{V_REC+2*it}:{V_REC+2*it+1}], v29, s[{S_REC}:{S_REC+3}], 0 offen offset:{32*it}')
    a(f'''
    v_cmp_eq_u32 vcc, 0, v26
    s_nop 1
    v_cndmask_b32 v30, 0, v{V_NT}, vcc
    ''')
    wave_scan_incl(a, 30)
    a(f'''
    v_mov_b32 v31, {L_MISC}
    v_cmp_eq_u32 vcc, 63, v{V_LANE}
    s_and_saveexec_b64 s[{S_EX}:{S_EX+1}], vcc
    ds_add_u32 v31, v30
    ds_max_u32 v31, v24 offset:4
    s_mov_b64 exec, s[{S_EX}:{S_EX+1}]
    s_cmp_lg_u32 s{S_DONE}, 0
    s_cbranch_scc1 K2_SKIPX
    ''')
    a(f'''
    s_waitcnt vmcnt(8)
    v_lshrrev_b32 v16, 4, v0
    v_and_b32 v17, 15, v0
    v_mul_u32_u24 v16, {XS}, v16
    v_lshl_add_u32 v16, v17, 4, v16
    v_cmp_gt_u32 vcc, 640, v0
    s_and_saveexec_b64 s[{S_EX}:{S_EX+1}], vcc
    ds_write_b128 v16, v[20:23] offset:{L_X}
    s_mov_b64 exec, s[{S_EX}:{S_EX+1}]
    s_cmp_ge_u32 s{S_W}, 8
    s_cbranch_scc1 K2_SKIPX
    s_lshl_b32 s{S_T0}, s{S_W}, 13           ; (M*4+u)*8192
    v_lshlrev_b32 v16, 4, v{V_LANE}
    v_add_u32 v17, 0x1000, v16
    ''')
    for T in range(2):
        for s in range(4):
            r = V_B + (T*4+s)*4
            a(f'buffer_load_dwordx4 v[{r}:{r+3}], v{16+T}, s[{S_FR}:{S_FR+3}], s{S_T0} offen offset:{s*1024}')
    a('K2_SKIPX:')
    a('s_waitcnt lgkmcnt(0)')
    a('s_barrier')
    stamp(a, dbg, 'bar1')
    a(f'''
    v_mov_b32 v31, {L_MISC}
    ds_read_b64 v[16:17], v31
    s_waitcnt lgkmcnt(0)
    v_readfirstlane_b32 s{S_T0}, v16
    v_readfirstlane_b32 s{S_MAXC}, v17
    s_mov_b32 s{S_LIM}, {LIM_BIG}
    s_cmp_gt_u32 s{S_T0}, {CAP_OK}
    s_cselect_b32 s{S_LIM}, {LIM_SMALL}, s{S_LIM}
    v_min_u32 v{V_NT}, s{S_LIM}, v{V_NT}
    v_and_b32 v26, 3, v0
    v_mov_b32 v31, 1
    s_waitcnt vmcnt(0)
    ''')
    stamp(a, dbg, 'recs')
    for it in range(5):
        a(f'v_and_b32 v{V_TP+it}, 0xfc, v{V_REC+2*it+1}')
        a(f'v_add_u32 v29, {4*it}, v26')
        a(f'v_cmp_lt_u32 vcc, v29, v{V_NT}')
        a(f's_and_saveexec_b64 s[{S_EX}:{S_EX+1}], vcc')
        a(f's_cbranch_execz K2_H{it}')
        a(f'ds_add_rtn_u32 v{V_RANK+it}, v{V_TP+it}, v31 offset:{L_CNT}')
        a(f'K2_H{it}:')
        a(f's_mov_b64 exec, s[{S_EX}:{S_EX+1}]')
    a(f'''
    s_cmp_lg_u32 s{S_DONE}, 0
    s_cbranch_scc1 K2_SKIPG
    s_cmp_ge_u32 s{S_W}, 8
    s_cbranch_scc1 K2_SKIPG
    v_and_b32 v16, 15, v{V_LANE}             ; n
    v_lshrrev_b32 v17, 4, v{V_LANE}          ; q
    v_mul_u32_u24 v18, {XS}, v16
    v_lshl_add_u32 v18, v17, 4, v18          ; n*XS + 16q
    ''')
    XB = 88; ACC = 64+48
    ACCS = [20, 28, 32]
    ACCS = [20, 28, 96+8]
    accb = {0: 20, 1: 28, 2: 104+0}
    acc = {(0,0):20,(0,1):24,(1,0):28,(1,1):32,(2,0):36,(2,1):100}
    xb = {0: 88, 1: 92-4+0, 2: 88}
    xregs = [88, 92, 96, 12]
    for nt in range(3):
        for s in range(4):
            a(f'ds_read_b128 v[{xregs[s]}:{xregs[s]+3}], v18 offset:{L_X + nt*16*XS + 64*s}')
        for T in range(2):
            for r in range(4): a(f'v_mov_b32 v{acc[(nt,T)]+r}, 0')
        for s in range(4):
            a(f's_waitcnt lgkmcnt({3-s})')
            for T in range(2):
                w = V_B + (T*4+s)*4
                d = acc[(nt,T)]
                a(f'v_mfma_f32_16x16x32_bf16 v[{d}:{d+3}], v[{w}:{w+3}], v[{xregs[s]}:{xregs[s]+3}], v[{d}:{d+3}]')
    a(f'''
    s_and_b32 s{S_T0}, s{S_W}, 3
    s_lshl_b32 s{S_T0}, s{S_T0}, 7           ; u*32*4
    s_cmp_ge_u32 s{S_W}, 4
    s_mov_b32 s{S_T1}, {L_Q}
    s_cselect_b32 s{S_T1}, {L_U}, s{S_T1}
    s_add_u32 s{S_T0}, s{S_T0}, s{S_T1}
    v_mul_u32_u24 v18, {ROWS}, v16
    v_lshl_add_u32 v18, v17, 5, v18          ; + 8q*4
    v_add_u32 v18, s{S_T0}, v18
    s_mov_b32 s{S_T1}, {NLOG2E:#x}
    s_cmp_ge_u32 s{S_W}, 4
    s_cselect_b32 s{S_T1}, 1.0, s{S_T1}
    s_nop 4
    ''')
    for nt in range(3):
        for T in range(2):
            for r in range(4): a(f'v_mul_f32 v{acc[(nt,T)]+r}, s{S_T1}, v{acc[(nt,T)]+r}')
        if nt == 2:
            a(f'v_cmp_gt_u32 vcc, 8, v16')
            a(f's_and_saveexec_b64 s[{S_EX}:{S_EX+1}], vcc')
        for T in range(2):
            d = acc[(nt,T)]
            a(f'ds_write_b128 v18, v[{d}:{d+3}] offset:{nt*16*ROWS + 16*T}')
        if nt == 2: a(f's_mov_b64 exec, s[{S_EX}:{S_EX+1}]')
    a('K2_SKIPG:')
    a('s_waitcnt lgkmcnt(0)')
    a('s_barrier')
    stamp(a, dbg, 'bar2')
    a(f'''
    ds_read_b32 v16, v{V_L4} offset:{L_CNT}
    s_waitcnt lgkmcnt(0)
    v_add_u32 v17, 3, v16
    v_and_b32 v17, -4, v17                   ; padded
    v_mov_b32 v18, v17
    ''')
    wave_scan_incl(a, 18)
    a(f'''
    v_readlane_b32 s{S_G}, v18, 63
    v_sub_u32 v18, v18, v17                  ; ps
    v_lshl_or_b32 v18, v16, 16, v18
    s_lshr_b32 s{S_G}, s{S_G}, 2             ; G groups
    s_min_u32 s{S_G}, s{S_G}, {LC//4}
    v_and_b32 v26, 3, v0
    ''')
    for it in range(5):
        a(f'ds_bpermute_b32 v{20+it}, v{V_TP+it}, v18')
    for it in range(5):
        a(f'v_add_u32 v29, {4*it}, v26')
        a(f'v_cmp_lt_u32 vcc, v29, v{V_NT}')
        a(f's_and_saveexec_b64 s[{S_EX}:{S_EX+1}], vcc')
        a(f's_cbranch_execz K2_S{it}')
        a(f's_waitcnt lgkmcnt(0)')
        t = 20 + it; rk = V_RANK + it; d0 = V_REC + 2*it; d1 = d0 + 1
        a(f'v_add_u32_sdwa v27, v{t}, v{rk} dst_sel:DWORD dst_unused:UNUSED_PAD src0_sel:WORD_0 src1_sel:DWORD')
        a(f'v_lshlrev_b32 v28, 2, v27')
        a(f'ds_write_b32 v28, v{d0} offset:{L_OFF}')
        a(f'v_and_b32 v30, -16, v28')
        a(f'v_add_u32 v30, v30, v28')
        a(f'ds_write_b16_d16_hi v30, v{d1} offset:{L_EIMG}')
        a(f'ds_write_b16_d16_hi v30, v{d1} offset:{L_EIMG+18}')
        a(f'v_and_b32 v31, 3, v{rk}')
        a(f'v_cmp_eq_u32 vcc, 0, v31')
        a(f's_and_b64 exec, exec, vcc')
        a(f'v_sub_u32_sdwa v31, v{t}, v{rk} dst_sel:DWORD dst_unused:UNUSED_PAD src0_sel:WORD_1 src1_sel:DWORD')
        a(f'v_lshl_or_b32 v31, v31, 8, v{V_TP+it}')
        a(f'ds_write_b32 v27, v31 offset:{L_INFO}')
        a(f'K2_S{it}:')
        a(f's_mov_b64 exec, s[{S_EX}:{S_EX+1}]')
    a(f'''
    v_and_b32 v16, 15, v{V_LANE}             ; m
    v_lshrrev_b32 v17, 4, v{V_LANE}          ; q'
    v_lshrrev_b32 v18, 2, v16                ; q(m)
    v_cmp_eq_u32 s[{S_M0}:{S_M0+1}], v17, v18
    v_and_b32 v19, 1, v16                    ; h
    v_bfe_u32 v20, v16, 1, 1                 ; i
    v_mov_b32 v21, 0x3f80
    v_mov_b32 v22, 0x3f800000
    v_cmp_eq_u32 vcc, 0, v19
    s_nop 1
    v_cndmask_b32 v21, v22, v21, vcc
    v_cndmask_b32 v21, 0, v21, s[{S_M0}:{S_M0+1}]
    v_cmp_eq_u32 vcc, 0, v20
    s_nop 1
    v_cndmask_b32 v{V_A[0]}, 0, v21, vcc     ; S0: i==0
    v_cndmask_b32 v{V_A[0]+1}, v21, 0, vcc   ; S1: i==1
    ''')
    a('K2_DBG1:')
    a(f'''
    v_mov_b32 v{V_A[1]}, v{V_A[0]}
    v_mov_b32 v{V_A[1]+1}, v{V_A[0]+1}
    v_lshlrev_b32 v19, 4, v19                ; h*16
    v_lshl_add_u32 v19, v20, 3, v19          ; + i*8
    v_add_u32 v19, {L_EIMG}, v19
    v_mov_b32 v22, {L_ZERO}
    v_cndmask_b32 v{V_EA}, v22, v19, s[{S_M0}:{S_M0+1}]
    v_mov_b32 v22, 128
    v_cndmask_b32 v{V_EINC}, 0, v22, s[{S_M0}:{S_M0+1}]
    v_lshlrev_b32 v22, 16, v{V_W3P}
    v_and_b32 v23, 0xffff0000, v{V_W3P}
    s_mov_b32 s{S_T0}, {NLOG2E:#x}
    v_mul_f32 v22, s{S_T0}, v22
    v_mul_f32 v23, s{S_T0}, v23
    v_cvt_pk_bf16_f32 v{V_W3}, v22, v23
    ''')
    for k in range(8):
        b = V_B + 4*k
        if k % 2 == 0:
            a(f'v_mov_b32 v{b+2}, v{V_W3}'); a(f'v_mov_b32 v{b+3}, 0')
        else:
            a(f'v_mov_b32 v{b+2}, 0'); a(f'v_mov_b32 v{b+3}, v{V_W3}')
    a(f'v_mov_b32 v{V_SB+2}, v{V_W3}'); a(f'v_mov_b32 v{V_SB+3}, 0')
    a(f'v_mov_b32 v{V_SB+6}, 0'); a(f'v_mov_b32 v{V_SB+7}, v{V_W3}')
    a(f'v_mov_b32 v{V_SA}, v{V_A[0]}'); a(f'v_mov_b32 v{V_SA+1}, v{V_A[0]+1}')
    a('s_waitcnt lgkmcnt(0)')
    a('s_barrier')
    stamp(a, dbg, 'bar3')
    a(f'''
    s_mul_i32 s{S_GS}, s{S_G}, s{S_W}
    s_lshr_b32 s{S_GS}, s{S_GS}, 4
    s_add_u32 s{S_T0}, s{S_W}, 1
    s_mul_i32 s{S_T0}, s{S_G}, s{S_T0}
    s_lshr_b32 s{S_T0}, s{S_T0}, 4
    s_sub_u32 s{S_NG}, s{S_T0}, s{S_GS}
    s_cmp_eq_u32 s{S_NG}, 0
    s_cbranch_scc1 K2_DONE
    s_lshl_b32 s{S_T0}, s{S_GS}, 2
    v_add_u32 v16, s{S_T0}, v{V_L4}
    ds_read_b32 v{V_INFO}, v16 offset:{L_INFO}
    ds_read_b32 v{V_INFON}, v16 offset:{L_INFO+4}
    s_lshl_b32 s{S_T0}, s{S_GS}, 4
    s_add_u32 s{S_T0}, s{S_T0}, {L_OFF}
    v_mov_b32 v{V_OFFA}, s{S_T0}
    s_lshl_b32 s{S_T0}, s{S_GS}, 5
    v_mov_b32 v16, s{S_T0}
    v_cndmask_b32 v16, 0, v16, s[{S_M0}:{S_M0+1}]
    v_add_u32 v{V_EA}, v{V_EA}, v16
    ''')
    for g in range(4):
        a(f'ds_read_b128 v[{16+4*g}:{19+4*g}], v{V_OFFA} offset:{16*g}')
    a(f'ds_read_b128 v[{V_OFF[0]}:{V_OFF[0]+3}], v{V_OFFA} offset:64')
    a(f'ds_read_b64 v[{V_A[0]+2}:{V_A[0]+3}], v{V_EA}')
    a('s_waitcnt lgkmcnt(2)')
    def row_loads(slot, offbase):
        dst = [V_B + 8*slot, V_B + 8*slot + 4, V_B + 8*slot + 1, V_B + 8*slot + 5]
        for p in range(4):
            if 'nogather' in EXP: a(f'buffer_load_dword v{dst[p]}, v{V_TMP+4}, s[{S_P}:{S_P+3}], 0 offen')
            else: a(f'buffer_load_dword v{dst[p]}, v{offbase+p}, s[{S_P}:{S_P+3}], 0 offen')
    if 'nogather' in EXP: a(f'v_mov_b32 v{V_TMP+4}, 0')
    for g in range(4): row_loads(g, 16 + 4*g)
    a(f'''
    v_lshrrev_b32 v16, 8, v{V_INFO}          ; rem
    v_add_u32 v16, -1, v16
    v_bfe_u32 v16, v16, 2, 4
    v_cmp_eq_u32 s[{S_MASK}:{S_MASK+1}], 0, v16
    s_sub_u32 s{S_T0}, s{S_NG}, 1
    s_bitset1_b64 s[{S_MASK}:{S_MASK+1}], s{S_T0}
    v_readfirstlane_b32 s{S_INFO}, v{V_INFO}
    s_and_b32 s{S_NODE}, s{S_INFO}, 0xfc     ; node*4
    s_mul_i32 s{S_T0}, s{S_NODE}, {ROWS//4}
    v_add_u32 v{V_AGGA}, s{S_T0}, v{V_L4}
    v_add_u32 v{V_QA}, s{S_T0}, v{V_L8}
    v_add_u32 v{V_QA}, {L_Q}, v{V_QA}
    ds_read2_b64 v[{V_C}:{V_C+3}], v{V_QA} offset0:0 offset1:0
    v_mov_b32 v{V_N}, 0
    v_mov_b32 v{V_N+1}, 0
    v_mov_b32 v{V_DN}, 1.0
    v_mov_b32 v{V_DN+1}, 1.0
    s_mov_b32 s{S_GI}, 0
    s_mov_b32 s{S_SEG}, 0
    ''')
    stamp(a, dbg, 'loopstart')
    a('K2_LOOP:')
    for s in range(4):
        A_ = V_A[s % 2]; An = V_A[(s+1) % 2]; O = V_OFF[s % 2]; On = V_OFF[(s+1) % 2]
        b0 = V_B + 8*s; b1 = b0 + 4
        a('s_waitcnt vmcnt(12) lgkmcnt(0)')
        a(f'v_mfma_f32_16x16x32_bf16 v[{V_D0}:{V_D0+3}], v[{A_}:{A_+3}], v[{b0}:{b0+3}], v[{V_C}:{V_C+3}]')
        a(f'v_mfma_f32_16x16x32_bf16 v[{V_D1}:{V_D1+3}], v[{A_}:{A_+3}], v[{b1}:{b1+3}], v[{V_C}:{V_C+3}]')
        row_loads(s, O)
        a(f'ds_read_b128 v[{On}:{On+3}], v{V_OFFA} offset:{16*(s+5)}')
        a(f'ds_read_b64 v[{An+2}:{An+3}], v{V_EA} offset:{32*(s+1)}')
        a(f's_bitcmp1_b64 s[{S_MASK}:{S_MASK+1}], s{S_GI}')
        a(f's_cbranch_scc1 K2_SPEC{s}')
        for p in range(4):
            a(f'v_exp_f32 v{V_E+2*p}, v{ZPOS[p]}')
            a(f'v_exp_f32 v{V_E+2*p+1}, v{ZPOS[p]+1}')
        for p in range(4):
            edge_ops(a, ZPOS[p], V_E + 2*p)
        a(f'K2_NEXT{s}:')
        a(f's_add_u32 s{S_GI}, s{S_GI}, 1')
    a(f'v_add_u32 v{V_OFFA}, 64, v{V_OFFA}')
    a(f'v_add_u32 v{V_EA}, v{V_EA}, v{V_EINC}')
    a('s_branch K2_LOOP')
    for s in range(4):
        a(f'K2_SPEC{s}:')
        a(f's_mov_b32 s{S_RET}, {s}')
        a(f's_branch K2_HANDLER')
    a('K2_HANDLER:')
    a(f'''
    v_readlane_b32 s{S_INFO}, v{V_INFO}, s{S_GI}
    v_exp_f32 v{V_E}, v{ZPOS[0]}
    v_exp_f32 v{V_E+1}, v{ZPOS[0]+1}
    s_lshr_b32 s{S_V}, s{S_INFO}, 8
    s_min_u32 s{S_V}, s{S_V}, 4
    s_cmp_lt_u32 s{S_V}, 2
    ''')
    edge_ops(a, ZPOS[0], V_E)
    a('s_cbranch_scc1 K2_FLUSH')
    for p in (1, 2, 3):
        a(f'v_exp_f32 v{V_E}, v{ZPOS[p]}')
        a(f'v_exp_f32 v{V_E+1}, v{ZPOS[p]+1}')
        a(f's_cmp_lt_u32 s{S_V}, {p+2}')
        edge_ops(a, ZPOS[p], V_E)
        if p < 3: a('s_cbranch_scc1 K2_FLUSH')
    a('K2_FLUSH:')
    if dbg: a('s_add_u32 s99, s99, 1')
    a(f'''
    v_rcp_f32 v{V_R}, v{V_DN}
    v_rcp_f32 v{V_R+1}, v{V_DN+1}
    v_cmp_ngt_f32 vcc, s{S_BIG}, v{V_DN}
    v_cmp_ngt_f32 s[{S_M1}:{S_M1+1}], s{S_BIG}, v{V_DN+1}
    v_pk_mul_f32 v[{V_R}:{V_R+1}], v[{V_N}:{V_N+1}], v[{V_R}:{V_R+1}]
    s_or_b64 s[{S_M1}:{S_M1+1}], s[{S_M1}:{S_M1+1}], vcc
    v_cmp_ngt_f32 vcc, s{S_BIG2}, |v{V_R}|
    s_or_b64 s[{S_M1}:{S_M1+1}], s[{S_M1}:{S_M1+1}], vcc
    v_cmp_ngt_f32 vcc, s{S_BIG2}, |v{V_R+1}|
    s_or_b64 s[{S_M1}:{S_M1+1}], s[{S_M1}:{S_M1+1}], vcc
    {'s_nop 0' if 'nogather' in EXP else 's_cbranch_scc1 K2_SLOW'}
    ''')
    a('K2_ADD:')
    a(f'''
    {'ds_write_b32' if 'noadd' in EXP else 'ds_add_f32'} v{V_AGGA}, v{V_R} offset:{L_AGG}
    {'ds_write_b32' if 'noadd' in EXP else 'ds_add_f32'} v{V_AGGA}, v{V_R+1} offset:{L_AGG+256}
    v_mov_b32 v{V_N}, 0
    v_mov_b32 v{V_N+1}, 0
    v_mov_b32 v{V_DN}, 1.0
    v_mov_b32 v{V_DN+1}, 1.0
    s_add_u32 s{S_SEG}, s{S_GI}, 1
    s_cmp_eq_u32 s{S_SEG}, s{S_NG}
    s_cbranch_scc1 K2_DONE
    v_readlane_b32 s{S_INFO}, v{V_INFON}, s{S_GI}
    s_and_b32 s{S_T0}, s{S_INFO}, 0xfc
    s_cmp_eq_u32 s{S_T0}, s{S_NODE}
    s_cbranch_scc1 K2_HRET
    s_mov_b32 s{S_NODE}, s{S_T0}
    s_mul_i32 s{S_T0}, s{S_NODE}, {ROWS//4}
    v_add_u32 v{V_AGGA}, s{S_T0}, v{V_L4}
    v_add_u32 v{V_QA}, s{S_T0}, v{V_L8}
    v_add_u32 v{V_QA}, {L_Q}, v{V_QA}
    ds_read2_b64 v[{V_C}:{V_C+3}], v{V_QA} offset0:0 offset1:0
    ''')
    a('K2_HRET:')
    for s_ in range(3):
        a(f's_cmp_eq_u32 s{S_RET}, {s_}')
        a(f's_cbranch_scc1 K2_NEXT{s_}')
    a('s_branch K2_NEXT3')
    a('K2_SLOW:')
    if dbg: a('s_add_u32 s98, s98, 1')
    a(f'''
    v_mov_b32 v{V_SACC}, 0
    v_mov_b32 v{V_SACC+1}, 0
    s_mov_b32 s{S_SG}, s{S_SEG}
    ''')
    a('K2_SLOOP:')
    a(f'''
    s_add_u32 s{S_T0}, s{S_GS}, s{S_SG}
    s_lshl_b32 s{S_T1}, s{S_T0}, 4
    s_add_u32 s{S_T1}, s{S_T1}, {L_OFF}
    v_mov_b32 v{V_TMP}, s{S_T1}
    ds_read_b128 v[{V_SOFF}:{V_SOFF+3}], v{V_TMP}
    v_and_b32 v{V_TMP+1}, 15, v{V_LANE}
    v_lshrrev_b32 v{V_TMP+2}, 4, v{V_LANE}
    v_lshrrev_b32 v{V_TMP+3}, 2, v{V_TMP+1}
    v_cmp_eq_u32 vcc, v{V_TMP+2}, v{V_TMP+3}
    v_and_b32 v{V_TMP+2}, 1, v{V_TMP+1}
    v_lshlrev_b32 v{V_TMP+2}, 4, v{V_TMP+2}
    v_bfe_u32 v{V_TMP+3}, v{V_TMP+1}, 1, 1
    v_lshl_add_u32 v{V_TMP+2}, v{V_TMP+3}, 3, v{V_TMP+2}
    s_lshl_b32 s{S_T1}, s{S_T0}, 5
    s_add_u32 s{S_T1}, s{S_T1}, {L_EIMG}
    v_add_u32 v{V_TMP+2}, s{S_T1}, v{V_TMP+2}
    v_mov_b32 v{V_TMP+3}, {L_ZERO}
    v_cndmask_b32 v{V_TMP+2}, v{V_TMP+3}, v{V_TMP+2}, vcc
    ds_read_b64 v[{V_SA+2}:{V_SA+3}], v{V_TMP+2}
    s_waitcnt lgkmcnt(0)
    buffer_load_dword v{V_SB}, v{V_SOFF}, s[{S_P}:{S_P+3}], 0 offen
    buffer_load_dword v{V_SB+4}, v{V_SOFF+1}, s[{S_P}:{S_P+3}], 0 offen
    buffer_load_dword v{V_SB+1}, v{V_SOFF+2}, s[{S_P}:{S_P+3}], 0 offen
    buffer_load_dword v{V_SB+5}, v{V_SOFF+3}, s[{S_P}:{S_P+3}], 0 offen
    s_waitcnt vmcnt(0)
    v_mfma_f32_16x16x32_bf16 v[{V_D0}:{V_D0+3}], v[{V_SA}:{V_SA+3}], v[{V_SB}:{V_SB+3}], v[{V_C}:{V_C+3}]
    v_mfma_f32_16x16x32_bf16 v[{V_D1}:{V_D1+3}], v[{V_SA}:{V_SA+3}], v[{V_SB+4}:{V_SB+7}], v[{V_C}:{V_C+3}]
    s_mov_b32 s{S_T2}, 4
    s_cmp_eq_u32 s{S_SG}, s{S_GI}
    s_cselect_b32 s{S_T2}, s{S_V}, s{S_T2}
    s_nop 7
    ''')
    for p in range(4):
        z = ZPOS[p]
        a(f'''
        v_exp_f32 v{V_E}, v{z}
        v_exp_f32 v{V_E+1}, v{z+1}
        s_nop 0
        v_add_f32 v{V_E}, 1.0, v{V_E}
        v_add_f32 v{V_E+1}, 1.0, v{V_E+1}
        v_rcp_f32 v{V_E}, v{V_E}
        v_rcp_f32 v{V_E+1}, v{V_E+1}
        s_cmp_lt_u32 s{S_T2}, {p+2}
        v_fma_f32 v{V_SACC}, v{z}, v{V_E}, v{V_SACC}
        v_fma_f32 v{V_SACC+1}, v{z+1}, v{V_E+1}, v{V_SACC+1}
        ''')
        if p < 3: a('s_cbranch_scc1 K2_SNEXT')
    a('K2_SNEXT:')
    a(f'''
    s_add_u32 s{S_SG}, s{S_SG}, 1
    s_cmp_le_u32 s{S_SG}, s{S_GI}
    s_cbranch_scc1 K2_SLOOP
    v_mov_b32 v{V_R}, v{V_SACC}
    v_mov_b32 v{V_R+1}, v{V_SACC+1}
    s_branch K2_ADD
    ''')
    a('K2_DONE:')
    stamp(a, dbg, 'loopend')
    a('s_waitcnt vmcnt(0) lgkmcnt(0)')
    a('s_barrier')
    stamp(a, dbg, 'bar4')
    a(f'''
    s_add_u32 s{S_DONE}, s{S_DONE}, s{S_LIM}
    s_cmp_ge_u32 s{S_DONE}, s{S_MAXC}
    s_cbranch_scc1 K2_EPI
    v_mov_b32 v16, 0
    v_cmp_gt_u32 vcc, 64, v0
    s_and_saveexec_b64 s[{S_EX}:{S_EX+1}], vcc
    ds_write_b32 v{V_L4}, v16 offset:{L_CNT}
    s_mov_b64 exec, s[{S_EX}:{S_EX+1}]
    v_mov_b32 v17, {L_MISC}
    ds_write_b32 v17, v16
    v_mov_b32 v24, 0
    s_waitcnt lgkmcnt(0)
    s_barrier
    s_branch K2_ROUND
    ''')
    a('K2_EPI:')
    a(f'''
    v_lshrrev_b32 v16, 4, v0                 ; row
    v_and_b32 v17, 15, v0                    ; piece
    v_mul_u32_u24 v18, {ROWS}, v16
    v_lshl_add_u32 v18, v17, 5, v18
    v_mul_u32_u24 v19, {XS}, v16
    v_lshl_add_u32 v19, v17, 4, v19
    v_cmp_gt_u32 vcc, 640, v0
    s_and_saveexec_b64 s[{S_EX}:{S_EX+1}], vcc
    s_cbranch_execz K2_E1
    ds_read_b128 v[20:23], v18 offset:{L_AGG}
    ds_read_b128 v[24:27], v18 offset:{L_AGG+16}
    s_mov_b32 s{S_T0}, {NLN2:#x}
    s_waitcnt lgkmcnt(0)
    ''')
    for r in range(8): a(f'v_mul_f32 v{20+r}, s{S_T0}, v{20+r}')
    for d in range(4): a(f'v_cvt_pk_bf16_f32 v{28+d}, v{20+2*d}, v{21+2*d}')
    a(f'ds_write_b128 v19, v[28:31] offset:{L_X}')
    a('K2_E1:')
    a(f's_mov_b64 exec, s[{S_EX}:{S_EX+1}]')
    a('s_waitcnt lgkmcnt(0)')
    a('s_barrier')
    stamp(a, dbg, 'bar5')
    a(f'''
    s_cmp_ge_u32 s{S_W}, 12
    s_cbranch_scc1 {'K2_END2' if dbg else 'K2_END'}
    s_and_b32 s{S_T0}, s{S_W}, 3             ; u
    s_lshr_b32 s{S_T1}, s{S_W}, 2            ; nt
    v_and_b32 v16, 15, v{V_LANE}             ; n
    v_lshrrev_b32 v17, 4, v{V_LANE}          ; q
    s_lshl_b32 s{S_T2}, s{S_T1}, 4           ; 16 nt
    v_add_u32 v16, s{S_T2}, v16
    v_mul_u32_u24 v18, {XS}, v16
    v_lshl_add_u32 v18, v17, 4, v18
    s_lshl_b32 s{S_T2}, s{S_T0}, 13
    s_add_u32 s{S_T2}, s{S_T2}, {L_W}
    v_lshlrev_b32 v19, 4, v{V_LANE}
    v_add_u32 v19, s{S_T2}, v19
    v_mul_u32_u24 v20, {ROWS}, v16
    v_lshl_add_u32 v20, v17, 5, v20
    s_lshl_b32 s{S_T2}, s{S_T0}, 7
    s_add_u32 s{S_T2}, s{S_T2}, {L_U}
    v_add_u32 v20, s{S_T2}, v20              ; U addr
    ds_read_b128 v[24:27], v20
    ds_read_b128 v[28:31], v20 offset:16
    ''')
    for s in range(4):
        a(f'ds_read_b128 v[{32+4*s}:{35+4*s}], v18 offset:{L_X + 64*s}')
    for T in range(2):
        for s in range(4):
            r = 56 + (T*4+s)*4
            a(f'ds_read_b128 v[{r}:{r+3}], v19 offset:{(T*4+s)*1024}')
    a('s_waitcnt lgkmcnt(0)')
    for s in range(4):
        for T in range(2):
            w = 56 + (T*4+s)*4; d = 24 + 4*T
            a(f'v_mfma_f32_16x16x32_bf16 v[{d}:{d+3}], v[{w}:{w+3}], v[{32+4*s}:{35+4*s}], v[{d}:{d+3}]')
    a(f'''
    s_mul_i32 s{S_T2}, s{S_B}, {NPB}
    v_add_u32 v21, s{S_T2}, v16
    v_lshlrev_b32 v21, 8, v21
    v_lshl_add_u32 v21, v17, 4, v21          ; + 8q*2
    s_lshl_b32 s{S_T2}, s{S_T0}, 6           ; 32u*2
    s_mov_b32 s{S_T1}, {NLOG2E:#x}
    s_nop 4
    ''')
    for r in range(8): a(f'v_mul_f32 v{32+r}, s{S_T1}, v{24+r}')
    for r in range(8): a(f'v_exp_f32 v{32+r}, v{32+r}')
    a('s_nop 0')
    for r in range(8): a(f'v_add_f32 v{32+r}, 1.0, v{32+r}')
    for r in range(8): a(f'v_rcp_f32 v{32+r}, v{32+r}')
    a('s_nop 0')
    for r in range(8): a(f'v_mul_f32 v{32+r}, v{24+r}, v{32+r}')
    for d in range(4): a(f'v_cvt_pk_bf16_f32 v{40+d}, v{32+2*d}, v{33+2*d}')
    a(f'''
    v_cmp_gt_u32 vcc, {NPB}, v16
    s_and_saveexec_b64 s[{S_EX}:{S_EX+1}], vcc
    s_cbranch_execz {'K2_END2' if dbg else 'K2_END'}
    buffer_store_dwordx4 v[40:43], v21, s[{S_OR}:{S_OR+3}], s{S_T2} offen
    ''')
    if dbg:
        a('K2_END2:')
        a(f's_mov_b64 exec, -1')
        a('s_waitcnt vmcnt(0)')
        stamp(a, dbg, 'end')
        n = len(STAMPS)
        a('s_waitcnt lgkmcnt(0)')
        a(f's_add_u32 s{S_X}, s{S_WS}, 0xC800000')
        a(f's_addc_u32 s{S_X+1}, s{S_WS+1}, 0')
        a(f's_mov_b32 s{S_X+2}, 0x400000')
        a(f's_mov_b32 s{S_X+3}, 0x00020000')
        a(f's_lshl_b32 s{S_T0}, s{S_B}, 4')
        a(f's_add_u32 s{S_T0}, s{S_T0}, s{S_W}')
        a(f's_mul_i32 s{S_T0}, s{S_T0}, {4*(n+4)}')
        a('v_mov_b32 v17, 0')
        a('v_cmp_eq_u32 vcc, 0, v1')
        a(f's_and_saveexec_b64 s[{S_EX}:{S_EX+1}], vcc')
        for k in range(n):
            a(f's_sub_u32 s{S_T1}, s{72+2*k}, s70')
            a(f'v_mov_b32 v16, s{S_T1}')
            a(f'buffer_store_dword v16, v17, s[{S_X}:{S_X+3}], s{S_T0} offen offset:{4*k}')
        a(f'v_mov_b32 v16, s96')
        a(f'buffer_store_dword v16, v17, s[{S_X}:{S_X+3}], s{S_T0} offen offset:{4*n}')
        for k,r in enumerate([98,99,S_NG]):
            a(f'v_mov_b32 v16, s{r}')
            a(f'buffer_store_dword v16, v17, s[{S_X}:{S_X+3}], s{S_T0} offen offset:{4*(n+1+k)}')
        a('s_endpgm')
    a('K2_END:')
    a('s_endpgm')
    a(kernel_desc(name, NVGPR))
    return name
```

```python
import sys
from common import *
import k1, k2
def gen(order, out):
    a = Asm()
    a.l.append(HDR)
    for o in order:
        if o == '1': a.l.append(f'; @launch kernel=mpnn_k1_kernel grid=({k1.K1_GRID},1,1) block=(256,1,1) lds={k1.K1_LDS}')
        if o == '2': a.l.append(f'; @launch kernel=mpnn_k2_kernel grid=({NB},1,1) block=(1024,1,1) lds={k2.K2_LDS}')
        if o == 'e': a.l.append(f'; @launch kernel=mpnn_e_kernel grid=(256,1,1) block=(64,1,1) lds=0')
    a.l.append('.amdgcn_target "amdgcn-amd-amdhsa--gfx950"')
    a.l.append('.text')
    k1.gen_k1(a)
    k2.gen_k2(a, 0)
    if 'e' in order:
        a(kernel_head('mpnn_e_kernel'))
        a('s_endpgm')
        a(kernel_desc('mpnn_e_kernel', 8, 16))
    open(out, 'w').write(a.text())
gen('12', 'v12.s')
gen('12e', 'v12e.s')
gen('1e2', 'v1e2.s')
gen('112', 'v112.s')
gen('122', 'v122.s')
gen('12eeee', 'v12eeee.s')
```

```python
import sys, re
from common import *
import k1, k2
def stamp_code(slot, inv, dbgadj):
    return f'''
  s_memrealtime s[92:93]
  s_load_dwordx2 s[94:95], s[0:1], 56
  s_waitcnt lgkmcnt(0)
  s_sub_u32 s94, s94, {dbgadj}
  s_subb_u32 s95, s95, 0
  s_mov_b32 s96, s94
  s_mov_b32 s97, s95
  s_mov_b32 s98, 256
  s_mov_b32 s99, 0x20000
  {'s_not_b32 s92, s92' if inv else 's_nop 0'}
  v_mov_b32 v120, s92
  v_mov_b32 v121, 0
  v_cmp_eq_u32 vcc, 0, v0
  s_and_saveexec_b64 s[100:101], vcc
  buffer_atomic_umax v120, v121, s[96:99], 0 offen offset:{4*slot}
  s_mov_b64 exec, s[100:101]
'''
a = Asm(); k1.gen_k1(a); b1 = a.text()
a = Asm(); k2.gen_k2(a, 0); b2 = a.text()
b1 = b1.replace('mpnn_k1_kernel:\n', 'mpnn_k1_kernel:\n' + stamp_code(0, True, 0), 1)
b1 = b1.replace('  s_endpgm', '  s_waitcnt vmcnt(0)\n' + stamp_code(1, False, 0) + '  s_endpgm')
b2 = b2.replace('mpnn_k2_kernel:\n', 'mpnn_k2_kernel:\n' + stamp_code(2, True, 512), 1)
b2 = b2.replace('  s_endpgm', '  s_waitcnt vmcnt(0)\n' + stamp_code(3, False, 512) + '  s_endpgm')
b2 = b2.replace('.amdhsa_next_free_vgpr 112', '.amdhsa_next_free_vgpr 128').replace('.amdhsa_accum_offset 112', '.amdhsa_accum_offset 128')
hdr = [HDR, f'; @launch kernel=mpnn_k1_kernel grid=({k1.K1_GRID},1,1) block=(256,1,1) lds={k1.K1_LDS}',
 f'; @launch kernel=mpnn_k2_kernel grid=({NB},1,1) block=(1024,1,1) lds={k2.K2_LDS}', '.amdgcn_target "amdgcn-amd-amdhsa--gfx950"', '.text']
open('vst.s', 'w').write('\n'.join(hdr) + '\n' + b1 + b2)
```

```python
import sys, re
from common import *
import k1, k2
def stamp_code(slot, inv, dbgadj):
    return f'''
  s_memrealtime s[92:93]
  s_load_dwordx2 s[94:95], s[0:1], 56
  s_waitcnt lgkmcnt(0)
  s_sub_u32 s94, s94, {dbgadj}
  s_subb_u32 s95, s95, 0
  s_mov_b32 s96, s94
  s_mov_b32 s97, s95
  s_mov_b32 s98, 256
  s_mov_b32 s99, 0x20000
  {'s_not_b32 s92, s92' if inv else 's_nop 0'}
  v_mov_b32 v120, s92
  v_mov_b32 v121, 0
  v_cmp_eq_u32 vcc, 0, v0
  s_and_saveexec_b64 s[100:101], vcc
  buffer_atomic_umax v120, v121, s[96:99], 0 offen offset:{4*slot}
  s_mov_b64 exec, s[100:101]
'''
COPY = '''
  s_sub_u32 s94, s94, 512
  s_subb_u32 s95, s95, 0
  s_load_dwordx2 s[92:93], s[94:95], 0
  s_waitcnt lgkmcnt(0)
  v_mov_b32 v120, s92
  v_mov_b32 v122, s93
  v_mov_b32 v121, 0
  v_cmp_eq_u32 vcc, 0, v0
  s_and_saveexec_b64 s[100:101], vcc
  buffer_store_dword v120, v121, s[96:99], 0 offen offset:0
  buffer_store_dword v122, v121, s[96:99], 0 offen offset:4
  s_mov_b64 exec, s[100:101]
'''
a = Asm(); k1.gen_k1(a); b1 = a.text()
a = Asm(); k2.gen_k2(a, 0); b2 = a.text()
b1 = b1.replace('mpnn_k1_kernel:\n', 'mpnn_k1_kernel:\n' + stamp_code(0, True, 0), 1)
b1 = b1.replace('  s_endpgm', '  s_waitcnt vmcnt(0)\n' + stamp_code(1, False, 0) + '  s_endpgm')
b2 = b2.replace('mpnn_k2_kernel:\n', 'mpnn_k2_kernel:\n' + stamp_code(2, True, 0), 1)
b2 = b2.replace('  s_endpgm', '  s_waitcnt vmcnt(0)\n' + stamp_code(3, False, 0) + COPY + '  s_endpgm')
b2 = b2.replace('.amdhsa_next_free_vgpr 112', '.amdhsa_next_free_vgpr 128').replace('.amdhsa_accum_offset 112', '.amdhsa_accum_offset 128')
hdr = [HDR, f'; @launch kernel=mpnn_k1_kernel grid=({k1.K1_GRID},1,1) block=(256,1,1) lds={k1.K1_LDS}',
 f'; @launch kernel=mpnn_k2_kernel grid=({NB},1,1) block=(1024,1,1) lds={k2.K2_LDS}', '.amdgcn_target "amdgcn-amd-amdhsa--gfx950"', '.text']
open('vst.s', 'w').write('\n'.join(hdr) + '\n' + b1 + b2)
```

```python
import sys, re
from common import *
import k1, k2
def wker(name):
    a = Asm()
    a(kernel_head(name))
    a('''
    s_cmp_ge_u32 s2, 256
    s_cbranch_scc1 W_END
    s_load_dwordx4 s[4:7], s[0:1], 0
    s_load_dwordx4 s[8:11], s[0:1], 16
    s_load_dwordx4 s[12:15], s[0:1], 32
    s_lshl_b32 s3, s2, 8
    v_add_u32 v1, s3, v0
    v_lshlrev_b32 v1, 4, v1
    s_waitcnt lgkmcnt(0)
    ''')
    srd(a, 16, 4, 5, N*256)
    srd(a, 20, 6, 7, E*2)
    srd(a, 24, 8, 9, E*4)
    srd(a, 28, 10, 11, E*4)
    srd(a, 32, 12, 13, 257*256)
    srd(a, 36, 14, 15, 256*256)
    a('s_mov_b32 s40, 0x100000\ns_mov_b32 s41, 0x200000')
    r = 4
    for (sr, passes) in ((16,3),(20,1),(24,2),(28,2),(32,1),(36,1)):
        for p in range(passes):
            so = ['0','s40','s41'][p]
            a(f'buffer_load_dwordx4 v[{r}:{r+3}], v1, s[{sr}:{sr+3}], {so} offen'); r += 4
    a('s_waitcnt vmcnt(0)')
    a('W_END:')
    a('s_endpgm')
    a(kernel_desc(name, 64, 48))
    return a.text()
def body(genf):
    a = Asm(); genf(a); return a.text()
def gen(order, out):
    hdr = [HDR]
    for o in order:
        if o == '1': hdr.append(f'; @launch kernel=mpnn_k1_kernel grid=({k1.K1_GRID},1,1) block=(256,1,1) lds={k1.K1_LDS}')
        if o == '2': hdr.append(f'; @launch kernel=mpnn_k2_kernel grid=({NB},1,1) block=(1024,1,1) lds={k2.K2_LDS}')
        if o == 'w': hdr.append(f'; @launch kernel=mpnn_w_kernel grid=(256,1,1) block=(256,1,1) lds=0')
    hdr.append('.amdgcn_target "amdgcn-amd-amdhsa--gfx950"')
    hdr.append('.text')
    t = '\n'.join(hdr) + '\n' + body(k1.gen_k1) + body(lambda a: k2.gen_k2(a, 0))
    if 'w' in order: t += wker('mpnn_w_kernel')
    open(out, 'w').write(t)
gen('12', 'v12.s')
gen('w12', 'vw12.s')
gen('ww12', 'vww12.s')
gen('12w', 'v12w.s')
```
